```python
import torch

def _softmax(x, axis=-1):
    return torch.softmax(x, dim=axis)
def _gelu(x):
    return torch.nn.functional.gelu(x, approximate="tanh")
def _silu(x):
    return torch.nn.functional.silu(x)
def _sigmoid(x):
    return torch.sigmoid(x)
def _layernorm(x, axis=-1, eps=1e-5):
    m = x.mean(dim=axis, keepdim=True)
    v = x.var(dim=axis, keepdim=True, unbiased=False)
    return (x - m) / torch.sqrt(v + eps)
def _scatter_add(tgt, idx, src, axis=0):
    return tgt.clone().index_add_(axis, idx, src)
def _segment_sum(src, seg, n):
    out = torch.zeros((n,) + src.shape[1:], dtype=src.dtype)
    return out.index_add_(0, seg, src)
def _pad(x, pw):
    flat = tuple(v for pair in reversed(pw) for v in pair)
    return torch.nn.functional.pad(x, flat)

kernel_name = 'sequential_preLN__mha_block_cached__swiglu_ffn__decode'

def setup_inputs():

    _w = (lambda a: (lambda t: t.to(torch.bfloat16) if t.is_floating_point() else t)(torch.as_tensor(a)))
    def _A_setup():
        B, Sq, D = 2, 1, 512
        H, Sk, Dh = 32, 8192, 128
        return {
            "x": _w((lambda *s: torch.randn(*s, dtype=torch.bfloat16) * 0.05)(B, Sq, D)),
            "k_cache": _w((lambda *s: torch.randn(*s, dtype=torch.bfloat16) * 3.2)(B, H, Sk, Dh)),
            "v_cache": _w((lambda *s: torch.randn(*s, dtype=torch.bfloat16) * 0.4)(B, H, Sk, Dh)),
            "wq": _w((lambda *s: torch.randn(*s, dtype=torch.bfloat16) * 3.2)(D, H * Dh) * (D ** -0.5)),
            "wo": _w((lambda *s: torch.randn(*s, dtype=torch.bfloat16) * 0.4)(H * Dh, D) * ((H * Dh) ** -0.5)),
        }
    _A_in = _A_setup()

    def _B_setup():
        B, S, D, F = 2, 1, 512, 1792
        return {
            "x": _w((lambda *s: torch.randn(*s, dtype=torch.bfloat16) * 0.05)(B, S, D)),
            "w_gate": _w((lambda *s: torch.randn(*s, dtype=torch.bfloat16) * 0.05)(D, F)),
            "w_up": _w((lambda *s: torch.randn(*s, dtype=torch.bfloat16) * 0.05)(D, F)),
            "w_down": _w((lambda *s: torch.randn(*s, dtype=torch.bfloat16) * 0.05)(F, D)),
        }
    _B_in = _B_setup()

    return {
        "A_x": _A_in["x"],
        "A_k_cache": _A_in["k_cache"],
        "A_v_cache": _A_in["v_cache"],
        "A_wq": _A_in["wq"],
        "A_wo": _A_in["wo"],
        "B_x": _B_in["x"],
        "B_w_gate": _B_in["w_gate"],
        "B_w_up": _B_in["w_up"],
        "B_w_down": _B_in["w_down"],
    }

def reference(A_x, A_k_cache, A_v_cache, A_wq, A_wo, B_x, B_w_gate, B_w_up, B_w_down):
    def _A_ref(x, k_cache, v_cache, wq, wo):
        B, Sq, D = x.shape
        H, Dh = 32, 128
        q = (lambda x, *d: x.permute(*d))((x @ wq).reshape(B, Sq, H, Dh), 0, 2, 1, 3)
        scores = torch.einsum("bhqd,bhkd->bhqk", q, k_cache) * (Dh ** -0.5)
        p = _softmax(scores, axis=-1)
        o = torch.einsum("bhqk,bhkd->bhqd", p, v_cache)
        return (lambda x, *d: x.permute(*d))(o, 0, 2, 1, 3).reshape(B, Sq, H * Dh) @ wo

    def _B_ref(x, w_gate, w_up, w_down):
        g = _silu(x @ w_gate)
        u = x @ w_up
        return (g * u) @ w_down

    x = A_x
    h = x + _A_ref(_layernorm(x, axis=-1), A_k_cache, A_v_cache, A_wq, A_wo)
    h2 = h + _B_ref(_layernorm(h, axis=-1), B_w_gate, B_w_up, B_w_down)
    return h2
```

```python
from kb import *
LOG2E = 0x3fb8aa3b
WS_PART = 0
WS_ATT = 0x40000
WS_OUT = 0x44000
NREP_ATT = 4
NREP_OUT = 8

def allreduce(k, op, r, t):
    for n in (8, 4, 2, 1):
        k("s_nop 1")
        k(f"{op}_dpp v{r}, v{r}, v{r} row_ror:{n} row_mask:0xf bank_mask:0xf")
    rows_reduce(k, op, r, t)

def rows_reduce(k, op, r, t):
    k(f"v_mov_b32 v{t}, v{r}")
    k("s_nop 1")
    k(f"v_permlane16_swap_b32 v{r}, v{t}")
    k(f"{op} v{r}, v{r}, v{t}")
    k(f"v_mov_b32 v{t}, v{r}")
    k("s_nop 1")
    k(f"v_permlane32_swap_b32 v{r}, v{t}")
    k(f"{op} v{r}, v{r}, v{t}")

def unpack8(k, dst, src):
    for q in range(4):
        k(f"v_lshlrev_b32 v{dst+2*q}, 16, v{src+q}")
        k(f"v_and_b32 v{dst+2*q+1}, 0xffff0000, v{src+q}")

def bf16r(k, r, n=1):
    if n == 1:
        k(f"v_cvt_pk_bf16_f32 v{r}, v{r}, v{r}")
        k(f"v_lshlrev_b32 v{r}, 16, v{r}")
    else:
        for q in range(0, n, 2):
            k(f"v_cvt_pk_bf16_f32 v{r+q}, v{r+q}, v{r+q+1}")
            k(f"v_and_b32 v{r+q+1}, 0xffff0000, v{r+q}")
            k(f"v_lshlrev_b32 v{r+q}, 16, v{r+q}")

def ln_stats(k, f, mean, sd, t, tmp8):
    k(f"v_add_f32 v{mean}, v{f}, v{f+1}")
    for q in range(2, 8): k(f"v_add_f32 v{mean}, v{mean}, v{f+q}")
    allreduce(k, "v_add_f32", mean, t)
    k(f"v_mul_f32 v{mean}, 0x3b000000, v{mean}")
    for q in range(8): k(f"v_sub_f32 v{tmp8+q}, v{f+q}, v{mean}")
    k(f"v_mul_f32 v{sd}, v{tmp8}, v{tmp8}")
    for q in range(1, 8): k(f"v_fmac_f32 v{sd}, v{tmp8+q}, v{tmp8+q}")
    allreduce(k, "v_add_f32", sd, t)
    k(f"v_mul_f32 v{sd}, 0x3b000000, v{sd}")
    bf16r(k, sd)
    k(f"v_add_f32 v{sd}, 0x3727c5ac, v{sd}")
    bf16r(k, sd)
    k(f"v_sqrt_f32 v{sd}, v{sd}")
    k("s_nop 0")
    bf16r(k, sd)
    bf16r(k, mean)
    k(f"v_rcp_f32 v{t+1}, v{sd}")
    k("s_nop 0")

def ln_apply(k, f, n, mean, sd, rcp, t):
    for q in range(n): k(f"v_sub_f32 v{f+q}, v{f+q}, v{mean}")
    bf16r(k, f, n)
    for q in range(n):
        k(f"v_mul_f32 v{t}, v{f+q}, v{rcp}")
        k(f"v_fma_f32 v{f+q}, -v{t}, v{sd}, v{f+q}")
        k(f"v_fma_f32 v{f+q}, v{f+q}, v{rcp}, v{t}")

def sparse_masks(k, m, lane, t):
    k(f"v_and_b32 v{t}, 1, v{lane}")
    k(f"v_cmp_eq_u32 vcc, 1, v{t}")
    k(f"v_mov_b32 v{t+1}, 0xffff")
    k(f"v_mov_b32 v{t+2}, 0xffff0000")
    k(f"v_cndmask_b32 v{t+1}, v{t+1}, v{t+2}, vcc")
    k(f"v_bfe_u32 v{t}, v{lane}, 1, 2")
    for q in range(4):
        k(f"v_cmp_eq_u32 vcc, {q}, v{t}")
        k("s_nop 1")
        k(f"v_cndmask_b32 v{m+q}, 0, v{t+1}, vcc")

def srd(k, s, base_lo, base_hi, size):
    k(f"s_mov_b32 s{s}, s{base_lo}")
    k(f"s_and_b32 s{s+1}, s{base_hi}, 0xffff")
    k(f"s_mov_b32 s{s+2}, {size}")
    k(f"s_mov_b32 s{s+3}, 0x20000")

STAMP_BASE = 256 << 20
def stamp(k, idx):
    k(f"s_memrealtime s[{64+2*idx}:{65+2*idx}]")
def stamp_flush(k, kidx, n, wsreg=28, wave_s="s3", wave=0, lane="v1"):
    st = k.label("stf")
    if wave_s: k(f"s_cmp_lg_u32 {wave_s}, {wave}\ns_cbranch_scc1 {st}")
    k("s_waitcnt lgkmcnt(0)")
    k(f"s_lshl_b32 s90, s2, 6\ns_add_u32 s90, s90, {STAMP_BASE + kidx*65536}\ns_add_u32 s84, s{wsreg}, s90\ns_addc_u32 s85, s{wsreg+1}, 0\ns_and_b32 s85, s85, 0xffff\ns_mov_b32 s86, 64\ns_mov_b32 s87, 0x20000")
    k("s_mov_b64 exec, 1")
    k("v_mov_b32 v10, 0")
    for i in range(n):
        k(f"v_mov_b32 v8, s{64+2*i}\nv_mov_b32 v9, s{65+2*i}")
        k(f"buffer_store_dwordx2 v[8:9], v10, s[84:87], 0 offen offset:{8*i}")
        k("s_waitcnt vmcnt(0)")
    k(f"{st}:")
```

```python
class K:
    def __init__(self, name, vgprs=256, sgprs=102, agprs=0):
        self.name = name; self.L = []; self.vgprs = vgprs; self.sgprs = sgprs; self.agprs = agprs
        self._lab = 0
    def __call__(self, s):
        for line in s.split("\n"):
            line = line.strip()
            if not line: continue
            if line.endswith(":") or line.startswith(";") or line.startswith("."):
                self.L.append(line)
            else:
                self.L.append("  " + line)
    def c(self, s): self.L.append("  ; " + s)
    def label(self, base="L"):
        self._lab += 1
        return f"{base}_{self.name[:6]}_{self._lab}"
    def text(self):
        hdr = f".globl {self.name}\n.p2align 8\n.type {self.name},@function\n{self.name}:"
        return hdr + "\n" + "\n".join(self.L) + "\n"
    def desc(self):
        nv = self.vgprs + self.agprs
        acc = (self.vgprs + 3) // 4 * 4
        if self.agprs: nv = acc + self.agprs
        return f""".amdhsa_kernel {self.name}
  .amdhsa_next_free_vgpr {nv}
  .amdhsa_next_free_sgpr {self.sgprs}
  .amdhsa_accum_offset {acc}
  .amdhsa_group_segment_fixed_size 0
  .amdhsa_kernarg_size 96
  .amdhsa_user_sgpr_count 2
  .amdhsa_user_sgpr_kernarg_segment_ptr 1
  .amdhsa_system_sgpr_workgroup_id_x 1
  .amdhsa_float_denorm_mode_32 3
.end_amdhsa_kernel"""
def vr(a, n=1): return f"v{a}" if n == 1 else f"v[{a}:{a+n-1}]"
def sr(a, n=1): return f"s{a}" if n == 1 else f"s[{a}:{a+n-1}]"
def ar(a, n=1): return f"a{a}" if n == 1 else f"a[{a}:{a+n-1}]"
def build(path, launches, kernels, header=""):
    out = []
    if header:
        for l in header.strip().split("\n"): out.append("; " + l)
    if len(launches) == 1 and launches[0][0].name == "sequential_preLN__mha_block_cached__swiglu_ffn__decode_kernel":
        k, g, b, lds = launches[0]
        out.append(f"; @launch grid=({g},1,1) block=({b},1,1) lds={lds}")
    else:
        for k, g, b, lds in launches:
            out.append(f"; @launch kernel={k.name} grid=({g},1,1) block=({b},1,1) lds={lds}")
    out.append('.amdgcn_target "amdgcn-amd-amdhsa--gfx950"')
    out.append(".text")
    for k in kernels: out.append(k.text())
    out.append('.section .rodata,"a"')
    for k in kernels:
        out.append(".p2align 6"); out.append(k.desc())
    open(path, "w").write("\n".join(out) + "\n")
```

```python
from common import *
import sys
KN = "sequential_preLN__mha_block_cached__swiglu_ffn__decode_kernel"
W_EPOCH, W_ML, W_H, W_P, W_F = 0x0, 0x1000, 0xA000, 0x10000, 0x90000
L_O, L_P, L_GU, L_WD, L_HN, L_G = 0, 4096, 20480, 53248, 69632, 71680
LDS_BYTES = 73728 + 1024
SPIN = 20000

class VM:
    def __init__(self, k): self.k = k; self.q = []
    def load(self, tag): self.q.append(tag)
    def wait(self, tag):
        if tag not in self.q: return
        idx = max(i for i, t in enumerate(self.q) if t == tag)
        n = len(self.q) - 1 - idx
        assert n <= 63, n
        self.k(f"s_waitcnt vmcnt({n})")
        self.q = self.q[idx+1:]
    def drain(self):
        self.k("s_waitcnt vmcnt(0)"); self.q = []

def v2(stamps=False, ldflags="nt", poll_sleep=1, name=KN, dbgst=False):
    k = K(name, vgprs=240, sgprs=102)
    vm = VM(k)
    LANE, VOFF = 1, 2
    SP, RING, WO, Q, MK, AS, ACC, X = 32, 64, 128, 192, 196, 200, 216, 224
    sH, sB, sSPL, sJ, sWB = 60, 61, 62, 63, 64
    sE, sT10, sT16, sTF, sSC, sL2E = 76, 77, 78, 79, 80, 81
    SB = 88
    def st(i):
        if stamps or dbgst: k(f"s_memrealtime s[{SB+2*i}:{SB+2*i+1}]")
    end = k.label("end")
    k(f"s_cmp_ge_u32 s2, 256\ns_cbranch_scc1 {end}")
    st(0)
    k("s_load_dwordx8 s[4:11], s[0:1], 0")
    k("s_load_dwordx2 s[12:13], s[0:1], 32")
    k("s_load_dwordx8 s[16:23], s[0:1], 48")
    k("s_load_dwordx2 s[14:15], s[0:1], 88")
    k(f"v_and_b32 v{LANE}, 63, v0\nv_lshrrev_b32 v3, 6, v0\nv_lshlrev_b32 v{VOFF}, 4, v{LANE}\nv_readfirstlane_b32 s3, v3")
    k(f"s_and_b32 s{sH}, s2, 31\ns_bfe_u32 s{sB}, s2, 0x10005\ns_lshr_b32 s{sSPL}, s2, 6\ns_lshr_b32 s{sJ}, s2, 5")
    k(f"v_lshrrev_b32 v16, 4, v{LANE}\nv_and_b32 v19, 15, v{LANE}")
    k("s_waitcnt lgkmcnt(0)")
    k(f"s_load_dword s{sE}, s[14:15], {W_EPOCH}")
    k(f"s_lshl_b32 s65, s{sB}, 10\ns_add_u32 s40, s4, s65\ns_addc_u32 s41, s5, 0\ns_and_b32 s41, s41, 0xffff\ns_mov_b32 s42, 1024\ns_mov_b32 s43, 0x20000")
    srd(k, 32, 10, 11, 4 << 20)
    k(f"s_add_u32 s66, s3, s{sJ}\ns_and_b32 s66, s66, 7")
    k(f"buffer_load_dwordx4 v[4:7], v{VOFF}, s[40:43], 0 offen"); vm.load("x")
    k("v_lshlrev_b32 v17, 5, v16\ns_lshl_b32 s67, s66, 7")
    k("buffer_load_dwordx4 v[8:11], v17, s[40:43], s67 offen"); vm.load("x")
    k("buffer_load_dwordx4 v[12:15], v17, s[40:43], s67 offen offset:16"); vm.load("x")
    k("v_lshlrev_b32 v18, 17, v16\nv_lshl_add_u32 v18, v19, 4, v18")
    k(f"s_lshl_b32 s68, s66, 19\ns_lshl_b32 s69, s{sH}, 8\ns_add_u32 s68, s68, s69")
    for n in range(16):
        k(f"buffer_load_dwordx4 v[{WO+4*n}:{WO+4*n+3}], v18, s[32:35], s68 offen"); vm.load(f"wq{n//4}")
        if n < 15: k("s_add_u32 s68, s68, 8192")
    k(f"s_and_b32 s65, s2, 63\ns_lshl_b32 s66, s65, 21\ns_lshr_b32 s67, s65, 11\ns_lshl_b32 s68, s{sSPL}, 19\ns_add_u32 s66, s66, s68")
    k("s_add_u32 s24, s6, s66\ns_addc_u32 s25, s7, s67\ns_and_b32 s25, s25, 0xffff\ns_mov_b32 s26, 0x80000\ns_mov_b32 s27, 0x20000")
    k("s_add_u32 s28, s8, s66\ns_addc_u32 s29, s9, s67\ns_and_b32 s29, s29, 0xffff\ns_mov_b32 s30, 0x80000\ns_mov_b32 s31, 0x20000")
    k(f"s_lshr_b32 s{sWB}, s3, 2\ns_lshl_b32 s{sWB}, s{sWB}, 18\ns_and_b32 s65, s3, 3\ns_lshl_b32 s65, s65, 12\ns_add_u32 s{sWB}, s{sWB}, s65")
    k("s_barrier")
    def issue_block(tb):
        srdn = "s[24:27]" if tb < 16 else "s[28:31]"
        t = tb % 16
        k(f"s_add_u32 s65, s{sWB}, {t*16384}")
        for c in range(4):
            r = RING + ((tb * 4 + c) % 16) * 4
            k(f"buffer_load_dwordx4 v[{r}:{r+3}], v{VOFF}, {srdn}, s65 offen offset:{c*1024} {ldflags}")
            vm.load(f"b{tb}")
    for tb in range(4): issue_block(tb)
    srd(k, 36, 12, 13, 4 << 20)
    srd(k, 44, 14, 15, 1 << 20)
    k("s_cmp_lt_u32 s2, 112")
    k(f"s_cselect_b32 s50, {512*3584}, 0\ns_cselect_b32 s58, {1792*1024}, 0")
    k("s_mov_b32 s48, s16\ns_and_b32 s49, s17, 0xffff\ns_mov_b32 s51, 0x20000")
    k("s_mov_b32 s52, s18\ns_and_b32 s53, s19, 0xffff\ns_mov_b32 s54, s50\ns_mov_b32 s55, 0x20000")
    k("s_mov_b32 s56, s20\ns_and_b32 s57, s21, 0xffff\ns_mov_b32 s59, 0x20000")
    sparse_masks(k, MK, LANE, 20)
    vm.wait("x")
    unpack8(k, 24, 4)
    ln_stats(k, 24, 20, 21, 22, 32)
    unpack8(k, 24, 8); unpack8(k, 32, 12)
    ln_apply(k, 24, 16, 20, 21, 23, 22)
    for q in range(8): k(f"v_cvt_pk_bf16_f32 v{40+q}, v{24+2*q}, v{24+2*q+1}")
    k("s_mov_b32 s70, 0x01000100\ns_mov_b32 s71, 0x03020302")
    for q in range(8): k(f"v_mov_b32 v{ACC+q}, 0")
    for n in range(16):
        if n % 4 == 0: vm.wait(f"wq{n//4}")
        a = AS + (n % 4) * 4
        k(f"v_perm_b32 v22, v{40 + n//2}, v{40 + n//2}, s{70 + (n & 1)}")
        for q in range(4): k(f"v_and_b32 v{a+q}, v22, v{MK+q}")
        k("s_nop 1")
        acc = ACC + 4 * (n & 1)
        k(f"v_mfma_f32_16x16x32_bf16 v[{acc}:{acc+3}], v[{a}:{a+3}], v[{WO+4*n}:{WO+4*n+3}], v[{acc}:{acc+3}]")
    k("s_nop 7")
    for q in range(4): k(f"v_add_f32 v{ACC+q}, v{ACC+q}, v{ACC+4+q}")
    k(f"v_lshlrev_b32 v{X}, 5, v19\nv_and_b32 v25, 1, v16\nv_lshl_add_u32 v{X}, v25, 4, v{X}\ns_lshl_b32 s65, s3, 9\nv_add_u32 v{X}, s65, v{X}")
    k(f"v_cmp_gt_u32 vcc, 32, v{LANE}\ns_and_saveexec_b64 s[82:83], vcc")
    k(f"ds_write_b128 v{X}, v[{ACC}:{ACC+3}]")
    k("s_mov_b64 exec, s[82:83]")
    k("s_waitcnt lgkmcnt(0)\ns_barrier")
    k("v_lshlrev_b32 v24, 5, v19")
    for w in range(8):
        k(f"ds_read_b128 v[{4+8*(w%2)}:{7+8*(w%2)}], v24 offset:{w*512}")
        k(f"ds_read_b128 v[{8+8*(w%2)}:{11+8*(w%2)}], v24 offset:{w*512+16}")
        k("s_waitcnt lgkmcnt(0)")
        if w == 0:
            for q in range(8): k(f"v_mov_b32 v{32+q}, v{4+q}")
        else:
            for q in range(8): k(f"v_add_f32 v{32+q}, v{32+q}, v{4+8*(w%2)+q}")
    for q in range(4): k(f"v_cvt_pk_bf16_f32 v{Q+q}, v{32+2*q}, v{32+2*q+1}")
    k(f"s_add_u32 s{sTF}, s{sE}, 1\ns_and_b32 s{sT10}, s{sTF}, 0x3ff\ns_and_b32 s{sT16}, s{sTF}, 0xffff")
    k(f"s_mov_b32 s{sSC}, 0x3db504f3\ns_mov_b32 s{sL2E}, {LOG2E:#x}")
    k(f"v_lshrrev_b32 v{X+1}, 4, v{LANE}\nv_and_b32 v{X+2}, 15, v{LANE}")
    k(f"v_lshlrev_b32 v{X+3}, 12, v{X+1}\nv_lshl_add_u32 v{X+3}, v{X+2}, 4, v{X+3}")
    k(f"s_lshl_b32 s72, s{sH}, 17\ns_lshl_b32 s65, s3, 14\ns_add_u32 s72, s72, s65")
    k("s_lshr_b32 s65, s2, 5\ns_bfe_u32 s66, s2, 0x20003\ns_and_b32 s67, s2, 7")
    k("s_lshl_b32 s68, s67, 2\ns_add_u32 s68, s68, s66\ns_lshl_b32 s69, s65, 5\ns_add_u32 s68, s68, s69")
    k("s_lshl_b32 s69, s67, 1\ns_add_u32 s69, s69, s66\ns_add_u32 s69, s69, 96")
    k("s_cmp_ge_u32 s2, 96\ns_cselect_b32 s73, s69, s68")
    k(f"v_lshrrev_b32 v4, 1, v{LANE}\nv_and_b32 v5, 1, v{LANE}\ns_mov_b32 s65, 3584\nv_mul_lo_u32 v{X+4}, v4, s65\nv_lshl_add_u32 v{X+4}, v5, 4, v{X+4}")
    k(f"s_mul_i32 s74, s3, {64*3584}\ns_lshl_b32 s65, s73, 5\ns_add_u32 s74, s74, s65")
    k("s_lshl_b32 s75, s73, 14\ns_lshl_b32 s65, s3, 11\ns_add_u32 s75, s75, s65")
    def extra_loads(tb):
        if 4 <= tb < 20:
            u = tb - 4; n, cb = divmod(u, 4)
            k(f"s_add_u32 s65, s72, {n*1024}")
            k(f"buffer_load_dwordx4 v[{WO+4*u}:{WO+4*u+3}], v{X+3}, s[36:39], s65 offen offset:{cb*256}")
            vm.load("wo")
        if 20 <= tb < 24:
            u = tb - 20; m, t = divmod(u, 2)
            k(f"s_lshl_b32 s65, s3, 12\ns_add_u32 s65, s65, {L_GU + m*2048 + t*1024}\ns_mov_b32 m0, s65")
            k(f"s_add_u32 s65, s74, {t*32*3584}")
            k(f"buffer_load_dwordx4 v{X+4}, s[{48+4*m}:{51+4*m}], s65 offen lds")
            vm.load("gu")
        if 24 <= tb < 26:
            t = tb - 24
            k(f"s_lshl_b32 s65, s3, 11\ns_add_u32 s65, s65, {L_WD + t*1024}\ns_mov_b32 m0, s65")
            k(f"s_add_u32 s65, s75, {t*1024}")
            k(f"buffer_load_dwordx4 v{VOFF}, s[56:59], s65 offen lds")
            vm.load("wd")
    st(1)
    MX, LS, NEGM, D = 4, 5, 6, 8
    k(f"v_mov_b32 v{MX}, 0xff800000")
    for tb in range(16):
        vm.wait(f"b{tb}")
        for c in range(4):
            r = RING + ((tb * 4 + c) % 16) * 4
            k(f"v_dot2_f32_bf16 v{D+c}, v{r}, v{Q}, 0")
        for q in range(1, 4):
            for c in range(4):
                r = RING + ((tb * 4 + c) % 16) * 4
                k(f"v_dot2_f32_bf16 v{D+c}, v{r+q}, v{Q+q}, v{D+c}")
        issue_block(tb + 4)
        extra_loads(tb)
        for n in (8, 4, 2, 1):
            for c in range(4):
                k(f"v_add_f32_dpp v{D+c}, v{D+c}, v{D+c} row_ror:{n} row_mask:0xf bank_mask:0xf")
        k(f"v_cvt_pk_bf16_f32 v{D+4}, v{D}, v{D+1}")
        k(f"v_cvt_pk_bf16_f32 v{D+5}, v{D+2}, v{D+3}")
        k(f"v_lshlrev_b32 v{D}, 16, v{D+4}\nv_and_b32 v{D+1}, 0xffff0000, v{D+4}")
        k(f"v_lshlrev_b32 v{D+2}, 16, v{D+5}\nv_and_b32 v{D+3}, 0xffff0000, v{D+5}")
        for c in range(4): k(f"v_mul_f32 v{D+c}, s{sSC}, v{D+c}")
        k(f"v_cvt_pk_bf16_f32 v{SP+2*tb}, v{D}, v{D+1}")
        k(f"v_cvt_pk_bf16_f32 v{SP+2*tb+1}, v{D+2}, v{D+3}")
        k(f"v_max3_f32 v{MX}, v{MX}, v{D}, v{D+1}")
        k(f"v_max3_f32 v{MX}, v{MX}, v{D+2}, v{D+3}")
    rows_reduce(k, "v_max_f32", MX, 7)
    bf16r(k, MX)
    k(f"v_mul_f32 v{NEGM}, s{sL2E}, v{MX}\nv_sub_f32 v{NEGM}, 0, v{NEGM}\nv_mov_b32 v{LS}, 0")
    st(2)
    for u in range(0, 32, 2):
        k(f"v_lshlrev_b32 v{D}, 16, v{SP+u}\nv_and_b32 v{D+1}, 0xffff0000, v{SP+u}")
        k(f"v_lshlrev_b32 v{D+2}, 16, v{SP+u+1}\nv_and_b32 v{D+3}, 0xffff0000, v{SP+u+1}")
        for c in range(4): k(f"v_fma_f32 v{D+c}, v{D+c}, s{sL2E}, v{NEGM}")
        for c in range(4): k(f"v_exp_f32 v{D+c}, v{D+c}")
        k("s_nop 0")
        k(f"v_cvt_pk_bf16_f32 v{SP+u}, v{D}, v{D+1}")
        k(f"v_cvt_pk_bf16_f32 v{SP+u+1}, v{D+2}, v{D+3}")
        k(f"v_add_f32 v{D}, v{D}, v{D+1}\nv_add_f32 v{D+2}, v{D+2}, v{D+3}\nv_add_f32 v{LS}, v{LS}, v{D}\nv_add_f32 v{LS}, v{LS}, v{D+2}")
    rows_reduce(k, "v_add_f32", LS, 7)
    k(f"s_and_b32 s65, s2, 63\ns_lshl_b32 s86, s65, 9\ns_add_u32 s86, s86, {W_ML}")
    k(f"s_lshl_b32 s65, s{sSPL}, 3\ns_add_u32 s65, s65, s3\ns_lshl_b32 s65, s65, 4\ns_add_u32 s65, s65, s86")
    k(f"v_or_b32 v{D}, s{sT16}, v{MX}")
    k(f"v_and_b32 v{D+1}, 0xfffffc00, v{LS}\nv_or_b32 v{D+1}, s{sT10}, v{D+1}")
    k(f"v_mov_b32 v{D+2}, s{sTF}\nv_mov_b32 v{D+3}, s{sTF}\nv_mov_b32 v{D+4}, 0")
    k("s_mov_b64 exec, 1")
    k(f"buffer_store_dwordx4 v[{D}:{D+3}], v{D+4}, s[44:47], s65 offen sc1")
    k("s_mov_b64 exec, -1")
    for q in range(8): k(f"v_mov_b32 v{ACC+q}, 0")
    st(3)
    def vblock(tb):
        u = (tb - 16) * 2
        for c in range(4):
            k(f"v_perm_b32 v{D+c}, v{SP+u+c//2}, v{SP+u+c//2}, s{70 + (c & 1)}")
        for c in range(4):
            for q in range(4): k(f"v_and_b32 v{AS+4*c+q}, v{D+c}, v{MK+q}")
        vm.wait(f"b{tb}")
        for c in range(4):
            r = RING + ((tb * 4 + c) % 16) * 4
            acc = ACC + 4 * (c & 1)
            k(f"v_mfma_f32_16x16x32_bf16 v[{acc}:{acc+3}], v[{AS+4*c}:{AS+4*c+3}], v[{r}:{r+3}], v[{acc}:{acc+3}]")
        if tb + 4 < 32: issue_block(tb + 4)
        extra_loads(tb)
    for tb in range(16, 26): vblock(tb)
    k("s_barrier")
    G = X + 6
    k(f"v_and_b32 v{X+5}, 31, v{LANE}\nv_lshlrev_b32 v{X+5}, 4, v{X+5}")
    k(f"buffer_load_dwordx4 v[{G}:{G+3}], v{X+5}, s[44:47], s86 offen sc1"); vm.load("ml")
    for tb in range(26, 30): vblock(tb)
    vm.wait("ml")
    def ml_check():
        k(f"v_and_b32 v12, 0xffff, v{G}\nv_and_b32 v13, 0x3ff, v{G+1}")
        k(f"v_cmp_ne_u32 s[68:69], s{sT16}, v12\nv_cmp_ne_u32 vcc, s{sT10}, v13\ns_or_b64 s[68:69], s[68:69], vcc")
        k(f"v_cmp_ne_u32 vcc, s{sTF}, v{G+2}\ns_or_b64 s[68:69], s[68:69], vcc\nv_cmp_ne_u32 vcc, s{sTF}, v{G+3}\ns_or_b64 s[68:69], s[68:69], vcc")
    ml_check()
    mlok = k.label("mlok"); mlp = k.label("mlp")
    k(f"s_cmp_eq_u64 s[68:69], 0\ns_cbranch_scc1 {mlok}")
    k(f"s_mov_b32 s84, {SPIN}")
    k(f"{mlp}:")
    k(f"s_sleep 4\nbuffer_load_dwordx4 v[{G}:{G+3}], v{X+5}, s[44:47], s86 offen sc1\ns_waitcnt vmcnt(0)")
    ml_check()
    k(f"s_cmp_eq_u64 s[68:69], 0\ns_cbranch_scc1 {mlok}\ns_sub_u32 s84, s84, 1\ns_cbranch_scc0 {mlp}")
    k(f"{mlok}:")
    k(f"v_and_b32 v12, 0xffff0000, v{G}\nv_and_b32 v13, 0xfffffc00, v{G+1}\nv_mov_b32 v14, v12")
    allreduce(k, "v_max_f32", 14, 7)
    k(f"v_sub_f32 v12, v12, v14\nv_mul_f32 v12, s{sL2E}, v12\nv_exp_f32 v12, v12\ns_nop 0\nv_mul_f32 v13, v13, v12")
    for n in (8, 4, 2, 1): k(f"s_nop 1\nv_add_f32_dpp v13, v13, v13 row_ror:{n} row_mask:0xf bank_mask:0xf")
    k("v_mov_b32 v7, v13\ns_nop 1\nv_permlane16_swap_b32 v13, v7\nv_add_f32 v13, v13, v7")
    k(f"v_sub_f32 v12, v{MX}, v14\nv_mul_f32 v12, s{sL2E}, v12\nv_exp_f32 v12, v12\nv_rcp_f32 v15, v13\ns_nop 0")
    k(f"v_mul_f32 v14, v12, v15\nv_fma_f32 v12, -v14, v13, v12\nv_fma_f32 v{X+10}, v12, v15, v14")
    vblock(30); vblock(31)
    k("s_nop 7")
    for q in range(4): k(f"v_add_f32 v{ACC+q}, v{ACC+q}, v{ACC+4+q}")
    for q in range(4): k(f"v_mul_f32 v{ACC+q}, v{ACC+q}, v{X+10}")
    st(4)
    k(f"v_cmp_gt_u32 vcc, 32, v{LANE}\ns_and_saveexec_b64 s[82:83], vcc")
    k(f"ds_write_b128 v{X}, v[{ACC}:{ACC+3}]")
    k("s_mov_b64 exec, s[82:83]")
    vm.drain()
    k("s_waitcnt lgkmcnt(0)\ns_barrier")
    k(f"v_lshlrev_b32 v24, 4, v{X+1}\ns_lshl_b32 s65, s3, 6\nv_add_u32 v24, s65, v24")
    for w in range(8): k(f"ds_read_b128 v[{RING+4*w}:{RING+4*w+3}], v24 offset:{L_O + w*512}")
    for w in range(1, 8):
        k(f"s_waitcnt lgkmcnt({7-w})")
        for n in range(4): k(f"v_add_f32 v{RING+n}, v{RING+n}, v{RING+4*w+n}")
    for n in range(4): k(f"v_cvt_pk_bf16_f32 v{D+n}, v{RING+n}, v{RING+n}")
    for n in range(4):
        for q in range(4): k(f"v_and_b32 v{AS+4*n+q}, v{D+n}, v{MK+q}")
    PA = RING + 32
    k("s_nop 1")
    for n in range(4):
        for cb in range(4):
            src_c = "0" if n == 0 else f"v[{PA+4*cb}:{PA+4*cb+3}]"
            k(f"v_mfma_f32_16x16x32_bf16 v[{PA+4*cb}:{PA+4*cb+3}], v[{AS+4*n}:{AS+4*n+3}], v[{WO+(n*4+cb)*4}:{WO+(n*4+cb)*4+3}], {src_c}")
    k(f"v_lshlrev_b32 v24, 4, v{LANE}\ns_lshl_b32 s65, s3, 11\ns_add_u32 s65, s65, {L_P}\nv_add_u32 v24, s65, v24")
    k("s_nop 4")
    k(f"v_cmp_gt_u32 vcc, 32, v{LANE}\ns_and_saveexec_b64 s[82:83], vcc")
    for cb in range(4): k(f"ds_write_b128 v24, v[{PA+4*cb}:{PA+4*cb+3}] offset:{cb*512}")
    k("s_mov_b64 exec, s[82:83]")
    k("s_waitcnt lgkmcnt(0)\ns_barrier")
    MSK = X + 11
    k(f"v_mov_b32 v{MSK}, 0xfffffc00")
    pub = k.label("pub")
    k(f"s_cmp_ge_u32 s3, 2\ns_cbranch_scc1 {pub}")
    k("v_lshlrev_b32 v24, 4, v0")
    for w in range(8): k(f"ds_read_b128 v[{RING+4*w}:{RING+4*w+3}], v24 offset:{L_P + w*2048}")
    for w in range(1, 8):
        k(f"s_waitcnt lgkmcnt({7-w})")
        for n in range(4): k(f"v_add_f32 v{RING+n}, v{RING+n}, v{RING+4*w+n}")
    for n in range(4): k(f"v_and_or_b32 v{RING+n}, v{RING+n}, v{MSK}, s{sT10}")
    k(f"s_lshl_b32 s65, s2, 11\ns_add_u32 s65, s65, {W_P}")
    k(f"buffer_store_dwordx4 v[{RING}:{RING+3}], v24, s[44:47], s65 offen sc1")
    k(f"{pub}:")
    st(5)
    red = k.label("red"); ffn = k.label("ffn"); fin = k.label("fin")
    k(f"s_cmp_ge_u32 s2, 224\ns_cbranch_scc1 {red}\ns_cmp_lt_u32 s2, 112\ns_cbranch_scc1 {ffn}\ns_branch {fin}")

    def check_tag10(regs, acc, t1, t2):
        first = True
        for r in regs:
            if first:
                k(f"v_and_b32 v{t1}, v{r}, v{r+1}\nv_or_b32 v{t2}, v{r}, v{r+1}")
            else:
                k(f"v_and_b32 v{t1}, v{t1}, v{r}\nv_or_b32 v{t2}, v{t2}, v{r}\nv_and_b32 v{t1}, v{t1}, v{r+1}\nv_or_b32 v{t2}, v{t2}, v{r+1}")
            k(f"v_and_b32 v{t1}, v{t1}, v{r+2}\nv_or3_b32 v{t2}, v{t2}, v{r+2}, v{r+3}\nv_and_b32 v{t1}, v{t1}, v{r+3}")
            first = False
    def poll2(r0, r1, voff, soff0, soff1, tagreg, tagmask, exec1=None, voff1=None):
        lp = k.label("poll"); dn = k.label("pdn")
        k(f"s_mov_b32 s84, {SPIN}\ns_mov_b64 s[82:83], exec")
        k(f"{lp}:")
        k(f"buffer_load_dwordx4 v[{r0}:{r0+3}], v{voff}, s[44:47], s{soff0} offen sc1")
        k(f"buffer_load_dwordx4 v[{r1}:{r1+3}], v{voff1 or voff}, s[44:47], s{soff1} offen sc1")
        k("s_waitcnt vmcnt(0)")
        check_tag10([r0, r1], None, 12, 13)
        k(f"v_xor_b32 v12, s{tagreg}, v12\nv_xor_b32 v13, s{tagreg}, v13\nv_or_b32 v12, v12, v13\nv_and_b32 v12, {tagmask}, v12\nv_cmp_ne_u32 vcc, 0, v12")
        k(f"s_and_b64 exec, exec, vcc\ns_cbranch_execz {dn}")
        if poll_sleep: k(f"s_sleep {poll_sleep}")
        k(f"s_sub_u32 s84, s84, 1\ns_cbranch_scc0 {lp}")
        k(f"{dn}:\ns_mov_b64 exec, s[82:83]")
    def red3(r):
        k("s_nop 1")
        for n in range(4): k(f"v_add_f32_dpp v{r+n}, v{r+n}, v{r+n} row_ror:8 row_mask:0xf bank_mask:0xf")
        for sw in ("v_permlane16_swap_b32", "v_permlane32_swap_b32"):
            for n in range(4): k(f"v_mov_b32 v{20+n}, v{r+n}")
            k("s_nop 1")
            for n in range(4): k(f"{sw} v{r+n}, v{20+n}")
            for n in range(4): k(f"v_add_f32 v{r+n}, v{r+n}, v{20+n}")

    k(f"{red}:")
    k("s_sub_u32 s66, s2, 224\ns_lshr_b32 s67, s66, 4\ns_and_b32 s68, s66, 15")
    k(f"v_and_b32 v24, 7, v{LANE}\ns_lshl_b32 s65, s68, 3\nv_add_u32 v24, s65, v24")
    k("v_lshrrev_b32 v25, 5, v24\nv_lshlrev_b32 v25, 7, v25\nv_and_b32 v26, 15, v24\nv_lshl_add_u32 v25, v26, 3, v25\nv_bfe_u32 v26, v24, 4, 1\nv_lshl_add_u32 v25, v26, 2, v25")
    k("v_lshlrev_b32 v25, 1, v25\ns_lshl_b32 s65, s67, 10\nv_add_u32 v25, s65, v25")
    srd(k, 40, 4, 5, 2048)
    k("buffer_load_dwordx2 v[28:29], v25, s[40:43], 0 offen")
    k(f"v_lshrrev_b32 v26, 3, v{LANE}\nv_lshlrev_b32 v26, 11, v26\nv_and_b32 v27, 7, v{LANE}\nv_lshl_add_u32 v26, v27, 4, v26")
    k(f"s_lshr_b32 s65, s3, 1\ns_lshl_b32 s65, s65, 6\ns_lshl_b32 s69, s67, 5\ns_add_u32 s65, s65, s69\ns_and_b32 s69, s3, 1\ns_lshl_b32 s69, s69, 4\ns_add_u32 s65, s65, s69")
    k(f"s_lshl_b32 s65, s65, 11\ns_lshl_b32 s69, s68, 7\ns_add_u32 s65, s65, s69\ns_add_u32 s70, s65, {W_P}\ns_add_u32 s71, s70, 16384")
    poll2(RING, RING + 4, 26, 70, 71, sT10, 0x3ff)
    for n in range(8): k(f"v_and_b32 v{RING+n}, v{MSK}, v{RING+n}")
    for n in range(4): k(f"v_add_f32 v{RING+n}, v{RING+n}, v{RING+4+n}")
    red3(RING)
    k(f"v_lshlrev_b32 v24, 4, v27\ns_lshl_b32 s65, s3, 7\nv_add_u32 v24, s65, v24")
    k(f"v_cmp_gt_u32 vcc, 8, v{LANE}\ns_and_saveexec_b64 s[82:83], vcc")
    k(f"ds_write_b128 v24, v[{RING}:{RING+3}]")
    k("s_mov_b64 exec, s[82:83]\ns_waitcnt lgkmcnt(0)\ns_barrier")
    HH = RING + 16
    nh = k.label("nh")
    k(f"s_cmp_lg_u32 s3, 0\ns_cbranch_scc1 {nh}")
    k(f"ds_read_b128 v[{RING}:{RING+3}], v{VOFF}\ns_waitcnt lgkmcnt(0)")
    red3(RING)
    bf16r(k, RING, 4)
    k(f"v_lshlrev_b32 v{HH}, 16, v28\nv_and_b32 v{HH+1}, 0xffff0000, v28\nv_lshlrev_b32 v{HH+2}, 16, v29\nv_and_b32 v{HH+3}, 0xffff0000, v29")
    for n in range(4): k(f"v_add_f32 v{HH+n}, v{HH+n}, v{RING+n}")
    bf16r(k, HH, 4)
    for n in range(4): k(f"v_or_b32 v{RING+n}, s{sT16}, v{HH+n}")
    k(f"s_lshl_b32 s65, s67, 11\ns_lshl_b32 s69, s68, 7\ns_add_u32 s65, s65, s69\ns_add_u32 s65, s65, {W_H}")
    k(f"v_lshlrev_b32 v24, 4, v27")
    k(f"v_cmp_gt_u32 vcc, 8, v{LANE}\ns_and_saveexec_b64 s[82:83], vcc")
    k(f"buffer_store_dwordx4 v[{RING}:{RING+3}], v24, s[44:47], s65 offen sc1")
    k("s_mov_b64 exec, s[82:83]")
    k(f"{nh}:")
    st(6)
    k(f"v_lshrrev_b32 v26, 3, v{LANE}\nv_lshlrev_b32 v30, 12, v26\nv_lshl_add_u32 v30, v27, 4, v30")
    k(f"s_mul_i32 s65, s3, {14*4096}\ns_lshl_b32 s69, s67, 11\ns_add_u32 s65, s65, s69\ns_lshl_b32 s69, s68, 7\ns_add_u32 s65, s65, s69\ns_add_u32 s70, s65, {W_F}")
    k("v_cmp_gt_u32 vcc, 6, v26\nv_add_u32 v31, 32768, v30\ns_nop 0\nv_cndmask_b32 v31, v30, v31, vcc")
    poll2(RING + 4, RING + 8, 30, 70, 70, sT10, 0x3ff, voff1=31)
    for n in range(8): k(f"v_and_b32 v{RING+4+n}, v{MSK}, v{RING+4+n}")
    k("v_cmp_gt_u32 vcc, 6, v26\ns_nop 1")
    for n in range(4): k(f"v_cndmask_b32 v{RING+8+n}, 0, v{RING+8+n}, vcc")
    for n in range(4): k(f"v_add_f32 v{RING+4+n}, v{RING+4+n}, v{RING+8+n}")
    red3(RING + 4)
    k(f"v_lshlrev_b32 v24, 4, v27\ns_lshl_b32 s65, s3, 7\ns_add_u32 s65, s65, 1024\nv_add_u32 v24, s65, v24")
    k(f"v_cmp_gt_u32 vcc, 8, v{LANE}\ns_and_saveexec_b64 s[82:83], vcc")
    k(f"ds_write_b128 v24, v[{RING+4}:{RING+7}]")
    k("s_mov_b64 exec, s[82:83]\ns_waitcnt lgkmcnt(0)\ns_barrier")
    k(f"s_cmp_lg_u32 s3, 0\ns_cbranch_scc1 {fin}")
    k(f"ds_read_b128 v[{RING}:{RING+3}], v{VOFF} offset:1024\ns_waitcnt lgkmcnt(0)")
    red3(RING)
    bf16r(k, RING, 4)
    for n in range(4): k(f"v_add_f32 v{RING+n}, v{RING+n}, v{HH+n}")
    k(f"v_cvt_pk_bf16_f32 v{RING}, v{RING}, v{RING+1}\nv_cvt_pk_bf16_f32 v{RING+1}, v{RING+2}, v{RING+3}")
    srd(k, 32, 22, 23, 2048)
    k(f"v_cmp_gt_u32 vcc, 8, v{LANE}\ns_and_saveexec_b64 s[82:83], vcc")
    k(f"buffer_store_dwordx2 v[{RING}:{RING+1}], v25, s[32:35], 0 offen")
    k(f"s_cmp_lg_u32 s2, 224\ns_cbranch_scc1 {fin}")
    k(f"s_mov_b64 exec, 1\nv_mov_b32 v12, s{sTF}\nv_mov_b32 v13, 0\nbuffer_store_dword v12, v13, s[44:47], 0 offen offset:{W_EPOCH}")
    k(f"s_branch {fin}")

    k(f"{ffn}:")
    k(f"v_lshrrev_b32 v10, 2, v{X+2}\nv_and_b32 v9, 3, v{X+2}")
    k(f"v_lshl_add_u32 v10, v{X+1}, 3, v10\nv_lshlrev_b32 v10, 5, v10\nv_lshl_add_u32 v10, v9, 3, v10\ns_lshl_b32 s65, s3, 12\ns_add_u32 s65, s65, {L_GU}\nv_add_u32 v10, s65, v10")
    FR = RING
    for m in range(2):
        for s in range(2):
            r0 = FR + (m*2+s)*4
            k(f"ds_read_b64_tr_b16 v[{r0}:{r0+1}], v10 offset:{m*2048 + s*1024}")
            k(f"ds_read_b64_tr_b16 v[{r0+2}:{r0+3}], v10 offset:{m*2048 + s*1024 + 128}")
    WDF = RING + 16
    k(f"v_lshlrev_b32 v11, 10, v{X+1}\nv_lshl_add_u32 v11, v{X+2}, 4, v11\ns_lshr_b32 s65, s3, 2\ns_lshl_b32 s65, s65, 13\ns_and_b32 s69, s3, 3\ns_lshl_b32 s69, s69, 8\ns_add_u32 s65, s65, s69\ns_add_u32 s65, s65, {L_WD}\nv_add_u32 v11, s65, v11")
    k(f"ds_read_b128 v[{WDF}:{WDF+3}], v11\nds_read_b128 v[{WDF+4}:{WDF+7}], v11 offset:4096")
    nw = k.label("nw")
    k(f"s_cmp_ge_u32 s3, 2\ns_cbranch_scc1 {nw}")
    HF = RING + 24
    k(f"s_lshl_b32 s70, s3, 11\ns_add_u32 s70, s70, {W_H}\ns_add_u32 s71, s70, 1024")
    poll2(HF, HF + 4, VOFF, 70, 71, sT16, 0xffff)
    for n in range(8): k(f"v_and_b32 v{HF+n}, 0xffff0000, v{HF+n}")
    ln_stats(k, HF, 20, 21, 22, 24)
    ln_apply(k, HF, 8, 20, 21, 23, 22)
    for q in range(4): k(f"v_cvt_pk_bf16_f32 v{24+q}, v{HF+2*q}, v{HF+2*q+1}")
    k(f"v_lshrrev_b32 v28, 5, v{LANE}\nv_lshlrev_b32 v28, 7, v28\nv_lshl_add_u32 v28, v{X+2}, 3, v28\nv_and_b32 v29, 1, v{X+1}\nv_lshl_add_u32 v28, v29, 2, v28")
    k(f"v_lshlrev_b32 v28, 1, v28\ns_lshl_b32 s65, s3, 10\ns_add_u32 s65, s65, {L_HN}\nv_add_u32 v28, s65, v28")
    k("ds_write_b64 v28, v[24:25]\nds_write_b64 v28, v[26:27] offset:512")
    k(f"{nw}:")
    st(6)
    k("s_waitcnt lgkmcnt(0)\ns_barrier")
    k(f"v_and_b32 v8, 1, v{LANE}\nv_lshlrev_b32 v8, 10, v8\nv_lshl_add_u32 v8, v{X+1}, 4, v8\ns_lshl_b32 s65, s3, 7\ns_add_u32 s65, s65, {L_HN}\nv_add_u32 v8, s65, v8")
    k("ds_read_b128 v[12:15], v8\nds_read_b128 v[16:19], v8 offset:64")
    k("s_waitcnt lgkmcnt(0)")
    for s in range(2):
        for m in range(2):
            r0 = FR + (m*2+s)*4
            src_c = "0" if s == 0 else f"v[{ACC+4*m}:{ACC+4*m+3}]"
            k(f"v_mfma_f32_16x16x32_bf16 v[{ACC+4*m}:{ACC+4*m+3}], v[{12+4*s}:{15+4*s}], v[{r0}:{r0+3}], {src_c}")
    k(f"v_lshlrev_b32 v8, 4, v{LANE}\ns_lshl_b32 s65, s3, 8\ns_add_u32 s65, s65, {L_G}\nv_add_u32 v8, s65, v8")
    k("s_nop 4")
    k(f"v_mov_b32 v{ACC+2}, v{ACC+4}\nv_mov_b32 v{ACC+3}, v{ACC+5}")
    k(f"v_cmp_gt_u32 vcc, 16, v{LANE}\ns_and_saveexec_b64 s[82:83], vcc")
    k(f"ds_write_b128 v8, v[{ACC}:{ACC+3}]")
    k("s_mov_b64 exec, s[82:83]\ns_waitcnt lgkmcnt(0)\ns_barrier")
    k(f"v_lshrrev_b32 v9, 3, v{X+2}\ns_lshr_b32 s65, s3, 2\ns_lshl_b32 s65, s65, 3\nv_add_u32 v10, s65, v{X+1}")
    k(f"v_lshlrev_b32 v10, 4, v10\nv_lshl_add_u32 v10, v9, 2, v10\nv_add_u32 v10, {L_G}, v10")
    GA, UA = RING + 32, RING + 48
    for t in range(2):
        for w in range(8): k(f"ds_read_b32 v{GA+8*t+w}, v10 offset:{w*256 + t*64}")
        if t == 1: k("s_waitcnt lgkmcnt(8)")
        for w in range(4): k(f"ds_read_b32 v{UA+8*t+w}, v10 offset:{w*256 + t*64 + 8}")
        k("s_waitcnt lgkmcnt(4)")
        for w in range(4, 8): k(f"ds_read_b32 v{UA+8*t+w}, v10 offset:{w*256 + t*64 + 8}")
        k("s_waitcnt lgkmcnt(4)")
    k("s_waitcnt lgkmcnt(0)")
    for t in range(2):
        g0, u0 = GA + 8*t, UA + 8*t
        for w in range(1, 8): k(f"v_add_f32 v{g0}, v{g0}, v{g0+w}\nv_add_f32 v{u0}, v{u0}, v{u0+w}")
        bf16r(k, g0); bf16r(k, u0)
        k(f"v_mul_f32 v{g0+1}, s{sL2E}, v{g0}\nv_sub_f32 v{g0+1}, 0, v{g0+1}\nv_exp_f32 v{g0+1}, v{g0+1}\ns_nop 0\nv_add_f32 v{g0+1}, 1.0, v{g0+1}\nv_rcp_f32 v{g0+2}, v{g0+1}\ns_nop 0")
        k(f"v_mul_f32 v{g0+3}, v{g0}, v{g0+2}\nv_fma_f32 v{g0+4}, -v{g0+3}, v{g0+1}, v{g0}\nv_fma_f32 v{g0+3}, v{g0+4}, v{g0+2}, v{g0+3}")
        bf16r(k, g0 + 3)
        k(f"v_mul_f32 v{g0+3}, v{g0+3}, v{u0}\nv_cvt_pk_bf16_f32 v{g0+3}, v{g0+3}, v{g0+3}")
        for q in range(4): k(f"v_and_b32 v{AS+4*t+q}, v{g0+3}, v{MK+q}")
    k("s_nop 1")
    k(f"v_mfma_f32_16x16x32_bf16 v[{ACC}:{ACC+3}], v[{AS}:{AS+3}], v[{WDF}:{WDF+3}], 0")
    k(f"v_mfma_f32_16x16x32_bf16 v[{ACC}:{ACC+3}], v[{AS+4}:{AS+7}], v[{WDF+4}:{WDF+7}], v[{ACC}:{ACC+3}]")
    k(f"v_lshlrev_b32 v8, 4, v{LANE}\ns_lshl_b32 s65, s3, 10\ns_add_u32 s65, s65, {L_P}\nv_add_u32 v8, s65, v8")
    k("s_nop 4")
    k(f"ds_write_b128 v8, v[{ACC}:{ACC+3}]")
    k("s_waitcnt lgkmcnt(0)\ns_barrier")
    k(f"s_cmp_ge_u32 s3, 4\ns_cbranch_scc1 {fin}")
    k("v_lshrrev_b32 v4, 7, v0\nv_and_b32 v5, 127, v0\nv_lshrrev_b32 v6, 5, v5\nv_and_b32 v7, 31, v5\nv_lshl_add_u32 v7, v4, 5, v7\nv_lshlrev_b32 v7, 4, v7\nv_lshl_add_u32 v7, v6, 10, v7")
    k(f"ds_read_b128 v[12:15], v7 offset:{L_P}\nds_read_b128 v[16:19], v7 offset:{L_P+4096}\ns_waitcnt lgkmcnt(0)")
    for n in range(4): k(f"v_add_f32 v{12+n}, v{12+n}, v{16+n}")
    for n in range(4): k(f"v_and_or_b32 v{12+n}, v{12+n}, v{MSK}, s{sT10}")
    k(f"v_lshlrev_b32 v4, 4, v0\ns_lshl_b32 s65, s2, 12\ns_add_u32 s65, s65, {W_F}")
    k("buffer_store_dwordx4 v[12:15], v4, s[44:47], s65 offen sc1")
    k(f"{fin}:")
    if stamps:
        stf = k.label("stf")
        k(f"s_cmp_lg_u32 s3, 0\ns_cbranch_scc1 {stf}")
        k("s_waitcnt vmcnt(0)")
        k("s_memrealtime s[4:5]\ns_waitcnt lgkmcnt(0)")
        k(f"s_lshl_b32 s65, s2, 6\ns_add_u32 s65, s65, {STAMP_BASE}\ns_add_u32 s84, s14, s65\ns_addc_u32 s85, s15, 0\ns_and_b32 s85, s85, 0xffff\ns_mov_b32 s86, 64\ns_mov_b32 s87, 0x20000")
        k("s_mov_b64 exec, 1\nv_mov_b32 v10, 0")
        for i in range(7):
            k(f"v_mov_b32 v8, s{SB+2*i}\nv_mov_b32 v9, s{SB+2*i+1}\nbuffer_store_dwordx2 v[8:9], v10, s[84:87], 0 offen offset:{8*i}\ns_waitcnt vmcnt(0)")
        k("v_mov_b32 v8, s4\nv_mov_b32 v9, s5\nbuffer_store_dwordx2 v[8:9], v10, s[84:87], 0 offen offset:56\ns_waitcnt vmcnt(0)")
        k(f"{stf}:")
    if dbgst:
        stf = k.label("stf")
        k(f"s_cmp_lg_u32 s3, 0\ns_cbranch_scc1 {stf}")
        k("s_waitcnt vmcnt(0)")
        k("s_memrealtime s[4:5]\ns_load_dwordx2 s[6:7], s[0:1], 80\ns_waitcnt lgkmcnt(0)")
        k("s_mov_b32 s84, s6\ns_and_b32 s85, s7, 0xffff\ns_mov_b32 s86, 256\ns_mov_b32 s87, 0x20000")
        k("s_mov_b64 exec, 1\nv_mov_b32 v10, 0")
        items = [(SB, True), (SB+2, False), (SB+2, True), (SB+8, False), (SB+8, True), (SB+10, False), (4, False), (SB+4, False)]
        for i, (r, inv) in enumerate(items):
            k(f"v_mov_b32 v8, s{r}")
            if inv: k("v_not_b32 v8, v8")
            k(f"buffer_atomic_umax v8, v10, s[84:87], 0 offen offset:{4*i}")
        k("s_waitcnt vmcnt(0)")
        k(f"{stf}:")
    k(f"{end}:\ns_endpgm")
    return k

if __name__ == "__main__":
    k = v2(); build("../v2.s", [(k, 256, 512, LDS_BYTES)], [k])
    k = v2(stamps=True); build("../v2_st.s", [(k, 256, 512, LDS_BYTES)], [k])
    k = v2(dbgst=True); build("../v2_dbg.s", [(k, 256, 512, LDS_BYTES)], [k])
```

```python
from kb import *
LOG2E = 0x3fb8aa3b
WS_PART = 0
WS_ATT = 0x40000
WS_OUT = 0x44000
NREP_ATT = 4
NREP_OUT = 8

def allreduce(k, op, r, t):
    for n in (8, 4, 2, 1):
        k("s_nop 1")
        k(f"{op}_dpp v{r}, v{r}, v{r} row_ror:{n} row_mask:0xf bank_mask:0xf")
    rows_reduce(k, op, r, t)

def rows_reduce(k, op, r, t):
    k(f"v_mov_b32 v{t}, v{r}")
    k("s_nop 1")
    k(f"v_permlane16_swap_b32 v{r}, v{t}")
    k(f"{op} v{r}, v{r}, v{t}")
    k(f"v_mov_b32 v{t}, v{r}")
    k("s_nop 1")
    k(f"v_permlane32_swap_b32 v{r}, v{t}")
    k(f"{op} v{r}, v{r}, v{t}")

def unpack8(k, dst, src):
    for q in range(4):
        k(f"v_lshlrev_b32 v{dst+2*q}, 16, v{src+q}")
        k(f"v_and_b32 v{dst+2*q+1}, 0xffff0000, v{src+q}")

def bf16r(k, r, n=1):
    if n == 1:
        k(f"v_cvt_pk_bf16_f32 v{r}, v{r}, v{r}")
        k(f"v_lshlrev_b32 v{r}, 16, v{r}")
    else:
        for q in range(0, n, 2):
            k(f"v_cvt_pk_bf16_f32 v{r+q}, v{r+q}, v{r+q+1}")
            k(f"v_and_b32 v{r+q+1}, 0xffff0000, v{r+q}")
            k(f"v_lshlrev_b32 v{r+q}, 16, v{r+q}")

def ln_stats(k, f, mean, sd, t, tmp8):
    k(f"v_add_f32 v{mean}, v{f}, v{f+1}")
    for q in range(2, 8): k(f"v_add_f32 v{mean}, v{mean}, v{f+q}")
    allreduce(k, "v_add_f32", mean, t)
    k(f"v_mul_f32 v{mean}, 0x3b000000, v{mean}")
    for q in range(8): k(f"v_sub_f32 v{tmp8+q}, v{f+q}, v{mean}")
    k(f"v_mul_f32 v{sd}, v{tmp8}, v{tmp8}")
    for q in range(1, 8): k(f"v_fmac_f32 v{sd}, v{tmp8+q}, v{tmp8+q}")
    allreduce(k, "v_add_f32", sd, t)
    k(f"v_mul_f32 v{sd}, 0x3b000000, v{sd}")
    bf16r(k, sd)
    k(f"v_add_f32 v{sd}, 0x3727c5ac, v{sd}")
    bf16r(k, sd)
    k(f"v_sqrt_f32 v{sd}, v{sd}")
    k("s_nop 0")
    bf16r(k, sd)
    bf16r(k, mean)
    k(f"v_rcp_f32 v{t+1}, v{sd}")
    k("s_nop 0")

def ln_apply(k, f, n, mean, sd, rcp, t, refine=True):
    for q in range(n): k(f"v_sub_f32 v{f+q}, v{f+q}, v{mean}")
    bf16r(k, f, n)
    for q in range(n):
        if not refine:
            k(f"v_mul_f32 v{f+q}, v{f+q}, v{rcp}"); continue
        k(f"v_mul_f32 v{t}, v{f+q}, v{rcp}")
        k(f"v_fma_f32 v{f+q}, -v{t}, v{sd}, v{f+q}")
        k(f"v_fma_f32 v{f+q}, v{f+q}, v{rcp}, v{t}")

def sparse_masks(k, m, lane, t):
    k(f"v_and_b32 v{t}, 1, v{lane}")
    k(f"v_cmp_eq_u32 vcc, 1, v{t}")
    k(f"v_mov_b32 v{t+1}, 0xffff")
    k(f"v_mov_b32 v{t+2}, 0xffff0000")
    k(f"v_cndmask_b32 v{t+1}, v{t+1}, v{t+2}, vcc")
    k(f"v_bfe_u32 v{t}, v{lane}, 1, 2")
    for q in range(4):
        k(f"v_cmp_eq_u32 vcc, {q}, v{t}")
        k("s_nop 1")
        k(f"v_cndmask_b32 v{m+q}, 0, v{t+1}, vcc")

def srd(k, s, base_lo, base_hi, size):
    k(f"s_mov_b32 s{s}, s{base_lo}")
    k(f"s_and_b32 s{s+1}, s{base_hi}, 0xffff")
    k(f"s_mov_b32 s{s+2}, {size}")
    k(f"s_mov_b32 s{s+3}, 0x20000")

STAMP_BASE = 256 << 20
def stamp(k, idx):
    k(f"s_memrealtime s[{64+2*idx}:{65+2*idx}]")
def stamp_flush(k, kidx, n, wsreg=28, wave_s="s3", wave=0, lane="v1"):
    st = k.label("stf")
    if wave_s: k(f"s_cmp_lg_u32 {wave_s}, {wave}\ns_cbranch_scc1 {st}")
    k("s_waitcnt lgkmcnt(0)")
    k(f"s_lshl_b32 s90, s2, 6\ns_add_u32 s90, s90, {STAMP_BASE + kidx*65536}\ns_add_u32 s84, s{wsreg}, s90\ns_addc_u32 s85, s{wsreg+1}, 0\ns_and_b32 s85, s85, 0xffff\ns_mov_b32 s86, 64\ns_mov_b32 s87, 0x20000")
    k("s_mov_b64 exec, 1")
    k("v_mov_b32 v10, 0")
    for i in range(n):
        k(f"v_mov_b32 v8, s{64+2*i}\nv_mov_b32 v9, s{65+2*i}")
        k(f"buffer_store_dwordx2 v[8:9], v10, s[84:87], 0 offen offset:{8*i}")
        k("s_waitcnt vmcnt(0)")
    k(f"{st}:")

def ln_stats1(k, f, mean, sd, t, tmp8, sC):
    k(f"v_readfirstlane_b32 s{sC}, v{f}")
    k("s_nop 1")
    for q in range(8): k(f"v_subrev_f32 v{tmp8+q}, s{sC}, v{f+q}")
    k(f"v_add_f32 v{mean}, v{tmp8}, v{tmp8+1}\nv_mul_f32 v{sd}, v{tmp8}, v{tmp8}")
    k(f"v_fmac_f32 v{sd}, v{tmp8+1}, v{tmp8+1}")
    for q in range(2, 8):
        k(f"v_add_f32 v{mean}, v{mean}, v{tmp8+q}\nv_fmac_f32 v{sd}, v{tmp8+q}, v{tmp8+q}")
    k("s_nop 0")
    for n in (8, 4, 2, 1):
        k(f"v_add_f32_dpp v{mean}, v{mean}, v{mean} row_ror:{n} row_mask:0xf bank_mask:0xf")
        k(f"v_add_f32_dpp v{sd}, v{sd}, v{sd} row_ror:{n} row_mask:0xf bank_mask:0xf")
        k("s_nop 0")
    for sw in ("v_permlane16_swap_b32", "v_permlane32_swap_b32"):
        k(f"v_mov_b32 v{t}, v{mean}\nv_mov_b32 v{t+2}, v{sd}\ns_nop 0")
        k(f"{sw} v{mean}, v{t}\n{sw} v{sd}, v{t+2}")
        k(f"v_add_f32 v{mean}, v{mean}, v{t}\nv_add_f32 v{sd}, v{sd}, v{t+2}")
    k(f"v_mul_f32 v{mean}, 0x3b000000, v{mean}\nv_mul_f32 v{sd}, 0x3b000000, v{sd}")
    k(f"v_fma_f32 v{sd}, -v{mean}, v{mean}, v{sd}")
    k(f"v_add_f32 v{mean}, s{sC}, v{mean}")
    k(f"v_max_f32 v{sd}, 0, v{sd}")
    k(f"v_cvt_pk_bf16_f32 v{sd}, v{sd}, v{mean}")
    k(f"v_and_b32 v{mean}, 0xffff0000, v{sd}\nv_lshlrev_b32 v{sd}, 16, v{sd}")
    k(f"v_add_f32 v{sd}, 0x3727c5ac, v{sd}")
    bf16r(k, sd)
    k(f"v_sqrt_f32 v{sd}, v{sd}")
    k("s_nop 0")
    bf16r(k, sd)
    k(f"v_rcp_f32 v{t+1}, v{sd}")
    k("s_nop 0")
```

```python
from common import *
import sys
KN = "sequential_preLN__mha_block_cached__swiglu_ffn__decode_kernel"
W_EPOCH, W_PAR, W_ML, W_H, W_P, W_F, W_QP = 0x0, 0x200, 0x1000, 0xA000, 0x10000, 0x90000, 0x100000
L_O, L_P, L_GU, L_WD, L_HN, L_G, L_Q, L_R = 0, 4096, 20480, 53248, 69632, 71680, 4096, 0
LDS_BYTES = 74752
SPIN = 20000

class VM:
    def __init__(self, k): self.k = k; self.q = []
    def load(self, tag): self.q.append(tag)
    def wait(self, tag):
        if tag not in self.q: return
        idx = max(i for i, t in enumerate(self.q) if t == tag)
        n = len(self.q) - 1 - idx
        assert n <= 63, n
        self.k(f"s_waitcnt vmcnt({n})")
        self.q = self.q[idx+1:]
    def drain(self):
        self.k("s_waitcnt vmcnt(0)"); self.q = []

def v4(stamps=None, kflags="nt", vflags="nt", early=8, pdepth=(1, 1, 1), psleep=(1, 1, 1), l2pf=None, name=KN, stw=0, ewin=None, noq=False, elast=7, bar_a=True, exp="", wopf=None, eb1=None, ackwait=True, qdelay=0, w0late=False, wlate=0, w0pf=0, pro4=False, eb_y=4, evenffn=False, xccdbg=False, par=False, outflags="", b0at=26, pk=False, dist=4, ninit=8, hmap=0, rot=None, share4=False, wflags="", colord=False, redcls=None, w0split=None, hst="sc1", hld="sc1", mlsleep=4, tlbwarm=False):
    k = K(name, vgprs=248 if stamps == "prog" else 240, sgprs=102)
    vm = VM(k)
    LANE, VOFF = 1, 2
    SP, RING, WO, Q, MK, AS, ACC, X = 32, 64, 128, 192, 196, 200, 216, 224
    sH, sB, sSPL, sWB = 60, 61, 62, 64
    sE, sT10, sT16, sTF, sSC, sL2E = 76, 77, 78, 79, 80, 81
    SB = 88
    def st(i, mode="main"):
        if stamps == "prog":
            if i == 0: k(f"s_memrealtime s[{SB}:{SB+1}]")
            return
        if stamps == mode or (stamps and i == 0): k(f"s_memrealtime s[{SB+2*i}:{SB+2*i+1}]")
    PROG = {3: 0, 7: 1, 11: 2, 15: 3, 19: 4, 23: 5, 27: 6, 31: 7}
    def prog(tb):
        if stamps == "prog" and tb in PROG:
            k(f"s_memrealtime s[{SB+2}:{SB+3}]\ns_waitcnt lgkmcnt(0)\nv_mov_b32 v{240+PROG[tb]}, s{SB+2}")
    def sum8x4(base):
        if pk:
            def pa(d, a, b): k(f"v_pk_add_f32 v[{d}:{d+1}], v[{a}:{a+1}], v[{b}:{b+1}]")
            k("s_waitcnt lgkmcnt(4)")
            for h_ in (0, 2): pa(base+h_, base+h_, base+4+h_); pa(base+8+h_, base+8+h_, base+12+h_)
            k("s_waitcnt lgkmcnt(0)")
            for h_ in (0, 2): pa(base+16+h_, base+16+h_, base+20+h_); pa(base+24+h_, base+24+h_, base+28+h_)
            for h_ in (0, 2): pa(base+h_, base+h_, base+8+h_); pa(base+16+h_, base+16+h_, base+24+h_)
            for h_ in (0, 2): pa(base+h_, base+h_, base+16+h_)
        else:
            k("s_waitcnt lgkmcnt(4)")
            for n in range(4): k(f"v_add_f32 v{base+n}, v{base+n}, v{base+4+n}\nv_add_f32 v{base+8+n}, v{base+8+n}, v{base+12+n}")
            k("s_waitcnt lgkmcnt(0)")
            for n in range(4): k(f"v_add_f32 v{base+16+n}, v{base+16+n}, v{base+20+n}\nv_add_f32 v{base+24+n}, v{base+24+n}, v{base+28+n}")
            for n in range(4): k(f"v_add_f32 v{base+n}, v{base+n}, v{base+8+n}\nv_add_f32 v{base+16+n}, v{base+16+n}, v{base+24+n}")
            for n in range(4): k(f"v_add_f32 v{base+n}, v{base+n}, v{base+16+n}")
    end = k.label("end")
    k(f"s_cmp_ge_u32 s2, 256\ns_cbranch_scc1 {end}")
    st(0)
    k("s_load_dwordx8 s[4:11], s[0:1], 0")
    k("s_load_dwordx2 s[12:13], s[0:1], 32")
    k("s_load_dwordx8 s[16:23], s[0:1], 48")
    k("s_load_dwordx2 s[14:15], s[0:1], 88")
    k(f"v_and_b32 v{LANE}, 63, v0\nv_lshrrev_b32 v3, 6, v0\nv_lshlrev_b32 v{VOFF}, 4, v{LANE}\nv_readfirstlane_b32 s3, v3")
    k(f"s_and_b32 s{sH}, s2, 31\ns_bfe_u32 s{sB}, s2, 0x10005\ns_lshr_b32 s{sSPL}, s2, 6")
    if hmap == 1:
        k(f"s_and_b32 s65, s2, 7\ns_lshl_b32 s65, s65, 2\ns_bfe_u32 s66, s2, 0x20003\ns_or_b32 s{sH}, s65, s66")
    if hmap == 2:
        k(f"s_and_b32 s65, s2, 0x1a\ns_and_b32 s66, s2, 1\ns_lshl_b32 s66, s66, 2\ns_or_b32 s65, s65, s66\ns_bfe_u32 s66, s2, 0x10002\ns_or_b32 s{sH}, s65, s66")
    k(f"v_lshrrev_b32 v16, 4, v{LANE}\nv_and_b32 v19, 15, v{LANE}")
    k("s_waitcnt lgkmcnt(0)")
    st(1, "dbg")
    k(f"s_load_dword s{sE}, s[14:15], {W_EPOCH}")
    k(f"s_lshl_b32 s65, s{sB}, 5\ns_or_b32 s65, s65, s{sH}\ns_lshl_b32 s66, s65, 21\ns_lshr_b32 s67, s65, 11")
    if not share4: k(f"s_lshl_b32 s68, s{sSPL}, 19\ns_add_u32 s66, s66, s68")
    KVSZ = 0x200000 if share4 else 0x80000
    k("s_add_u32 s24, s6, s66\ns_addc_u32 s25, s7, s67\ns_and_b32 s25, s25, 0xffff\ns_mov_b32 s27, 0x20000"); k(f"s_mov_b32 s26, {KVSZ}")
    k("s_add_u32 s28, s8, s66\ns_addc_u32 s29, s9, s67\ns_and_b32 s29, s29, 0xffff\ns_mov_b32 s31, 0x20000"); k(f"s_mov_b32 s30, {KVSZ}")
    if share4:
        k(f"s_lshr_b32 s{sWB}, s3, 2\ns_lshl_b32 s{sWB}, s{sWB}, 20\ns_and_b32 s65, s3, 3\ns_lshl_b32 s65, s65, 12\ns_add_u32 s{sWB}, s{sWB}, s65\ns_lshl_b32 s65, s{sSPL}, 14\ns_add_u32 s{sWB}, s{sWB}, s65")
    else:
        k(f"s_lshr_b32 s{sWB}, s3, 2\ns_lshl_b32 s{sWB}, s{sWB}, 18\ns_and_b32 s65, s3, 3\ns_lshl_b32 s65, s65, 12\ns_add_u32 s{sWB}, s{sWB}, s65")
    TSTEP = 65536 if share4 else 16384
    if rot is not None:
        k(rot)
        k(f"s_and_b32 s63, s63, 15\ns_lshl_b32 s63, s63, {16 if share4 else 14}")
    def breg(tb, c):
        if ninit == 8 and 4 <= tb < 8: return WO + ((tb - 4) * 4 + c) * 4
        return RING + ((tb * 4 + c) % 16) * 4
    def next_issue(tb):
        if ninit == 8:
            if tb < 4: return tb + 8 if dist == 4 else None
            if tb < 8: return None if dist == 4 else (tb + dist if tb + dist >= 8 else None)
            return tb + dist if tb + dist < 32 else None
        nxt = tb + dist
        return nxt if (nxt >= ninit and nxt < 32) else None
    def issue_block(tb, track=True):
        srdn = "s[24:27]" if tb < 16 else "s[28:31]"
        t = tb % 16
        if rot is not None:
            k(f"s_add_u32 s65, s63, {t*TSTEP}\ns_and_b32 s65, s65, {16*TSTEP-1:#x}\ns_add_u32 s65, s65, s{sWB}")
        else:
            k(f"s_add_u32 s65, s{sWB}, {t*TSTEP}")
        for c in range(4):
            r = breg(tb, c)
            fl = kflags if tb < 16 else vflags
            k(f"buffer_load_dwordx4 v[{r}:{r+3}], v{VOFF}, {srdn}, s65 offen offset:{c*1024} {fl}")
            if track: vm.load(f"b{tb}")
    ctl = k.label("ctl"); jq = k.label("jq")
    if pro4:
        k(f"s_cmp_lt_u32 s3, 4\ns_cbranch_scc1 {ctl}")
        for tb in range(eb_y): issue_block(tb, track=False)
        k("s_barrier")
        for tb in range(eb_y, early): issue_block(tb, track=False)
        k(f"s_branch {jq}")
        k(f"{ctl}:")
        k(f"s_lshl_b32 s65, s{sB}, 10\ns_add_u32 s40, s4, s65\ns_addc_u32 s41, s5, 0\ns_and_b32 s41, s41, 0xffff\ns_mov_b32 s42, 1024\ns_mov_b32 s43, 0x20000")
        srd(k, 32, 10, 11, 4 << 20)
        k(f"buffer_load_dwordx4 v[4:7], v{VOFF}, s[40:43], 0 offen")
        k(f"v_lshlrev_b32 v17, 4, v16\ns_lshl_b32 s67, s{sSPL}, 8\ns_lshl_b32 s68, s3, 6\ns_add_u32 s67, s67, s68")
        k("buffer_load_dwordx4 v[32:35], v17, s[40:43], s67 offen")
        k("v_lshlrev_b32 v18, 16, v16\nv_lshl_add_u32 v18, v19, 4, v18")
        k(f"s_lshl_b32 s68, s{sSPL}, 20\ns_lshl_b32 s69, s3, 18\ns_add_u32 s68, s68, s69\ns_lshl_b32 s69, s{sH}, 8\ns_add_u32 s68, s68, s69")
        for n in range(8):
            k(f"buffer_load_dwordx4 v[{WO+4*n}:{WO+4*n+3}], v18, s[32:35], s68 offen {wflags}")
            if n < 7: k("s_add_u32 s68, s68, 8192")
        srd(k, 44, 14, 15, 2 << 20)
        sparse_masks(k, MK, LANE, 20)
        k(f"v_lshlrev_b32 v36, 5, v19\nv_and_b32 v25, 1, v16\nv_lshl_add_u32 v36, v25, 4, v36\ns_lshl_b32 s65, s3, 9\nv_add_u32 v36, s65, v36")
        k("s_mov_b32 s70, 0x01000100\ns_mov_b32 s71, 0x03020302")
        k("s_waitcnt vmcnt(9)")
        unpack8(k, 24, 4)
        k("s_nop 0")
        ln_stats1(k, 24, 20, 21, 22, 8, 65)
        k("s_waitcnt vmcnt(8)")
        unpack8(k, 4, 32)
        ln_apply(k, 4, 8, 20, 21, 23, 22, refine=False)
        for q in range(4): k(f"v_cvt_pk_bf16_f32 v{48+q}, v{4+2*q}, v{4+2*q+1}")
        for n in range(8):
            if n % 4 == 0: k(f"s_waitcnt vmcnt({4 - n})")
            a = AS + (n % 4) * 4
            k(f"v_perm_b32 v22, v{48 + n//2}, v{48 + n//2}, s{70 + (n & 1)}")
            for q in range(4): k(f"v_and_b32 v{a+q}, v22, v{MK+q}")
            k("s_nop 1")
            acc = ACC + 4 * (n & 1)
            src_c = "0" if n < 2 else f"v[{acc}:{acc+3}]"
            k(f"v_mfma_f32_16x16x32_bf16 v[{acc}:{acc+3}], v[{a}:{a+3}], v[{WO+4*n}:{WO+4*n+3}], {src_c}")
        st(3, "pro")
        k(f"v_cmp_gt_u32 vcc, 32, v{LANE}")
        k("s_nop 6")
        for q in range(4): k(f"v_add_f32 v{ACC+q}, v{ACC+q}, v{ACC+4+q}")
        k("s_and_saveexec_b64 s[82:83], vcc")
        k(f"ds_write_b128 v36, v[{ACC}:{ACC+3}]")
        k("s_mov_b64 exec, s[82:83]")
        k("s_waitcnt lgkmcnt(0)\ns_barrier")
        np0 = k.label("np0")
        k(f"s_cmp_lg_u32 s3, 0\ns_cbranch_scc1 {np0}")
        k(f"v_lshlrev_b32 v36, 5, v19\nv_and_b32 v25, 1, v16\nv_lshl_add_u32 v36, v25, 4, v36")
        for w in range(4): k(f"ds_read_b128 v[{12+4*w}:{15+4*w}], v36 offset:{w*512}")
        k(f"s_add_u32 s{sTF}, s{sE}, 1")
        k(f"v_lshlrev_b32 v28, 5, v{LANE}\ns_lshl_b32 s65, s2, 10\ns_add_u32 s65, s65, {W_QP}")
        k(f"v_mov_b32 v5, s{sTF}\nv_mov_b32 v7, s{sTF}\nv_mov_b32 v9, s{sTF}\nv_mov_b32 v11, s{sTF}")
        k("s_waitcnt lgkmcnt(0)")
        for q in range(4): k(f"v_add_f32 v{12+q}, v{12+q}, v{16+q}\nv_add_f32 v{20+q}, v{20+q}, v{24+q}")
        k("v_add_f32 v4, v12, v20\nv_add_f32 v6, v13, v21\nv_add_f32 v8, v14, v22\nv_add_f32 v10, v15, v23")
        k(f"v_cmp_gt_u32 vcc, 32, v{LANE}\ns_and_saveexec_b64 s[82:83], vcc")
        k("buffer_store_dwordx4 v[4:7], v28, s[44:47], s65 offen sc1\nbuffer_store_dwordx4 v[8:11], v28, s[44:47], s65 offen offset:16 sc1")
        k("s_mov_b64 exec, s[82:83]")
        if par:
            k(f"s_cmp_lg_u32 s2, 0\ns_cbranch_scc1 {np0}")
            k(f"s_getreg_b32 s65, hwreg(HW_REG_XCC_ID)\ns_and_b32 s65, s65, 1\ns_lshl_b32 s65, s65, 16\ns_and_b32 s66, s{sTF}, 0xffff\ns_or_b32 s65, s65, s66")
            k(f"v_mov_b32 v12, s65\nv_mov_b32 v13, s{sTF}\nv_mov_b32 v14, s{sTF}\nv_mov_b32 v15, s{sTF}\nv_mov_b32 v16, 0")
            k("s_mov_b64 exec, 1")
            k(f"buffer_store_dwordx4 v[12:15], v16, s[44:47], 0 offen offset:{W_PAR} sc1")
            k("s_mov_b64 exec, -1")
            k(f"v_lshrrev_b32 v16, 4, v{LANE}")
        k(f"{np0}:")
        if w0split is None:
            for tb in range(early): issue_block(tb, track=False)
            k(f"s_cmp_lg_u32 s3, 0\ns_cbranch_scc1 {jq}")
        else:
            w0p = k.label("w0p")
            for tb in range(w0split): issue_block(tb, track=False)
            k(f"s_cmp_eq_u32 s3, 0\ns_cbranch_scc1 {w0p}")
            for tb in range(w0split, early): issue_block(tb, track=False)
            k(f"s_branch {jq}")
            k(f"{w0p}:")
        k(f"s_and_b32 s66, s2, 63\ns_lshl_b32 s66, s66, 10\ns_add_u32 s66, s66, {W_QP}")
        lp = k.label("qp"); dn = k.label("qd")
        k(f"s_mov_b32 s84, {SPIN}")
        k(f"{lp}:")
        for s_ in range(4):
            k(f"buffer_load_dwordx4 v[{32+4*s_}:{35+4*s_}], v{VOFF}, s[44:47], s66 offen sc1")
            if s_ < 3: k("s_add_u32 s66, s66, 65536")
        k(f"s_sub_u32 s66, s66, {3*65536}")
        k("s_waitcnt vmcnt(0)")
        k(f"v_xor_b32 v4, s{sTF}, v33\nv_xor_b32 v5, s{sTF}, v35")
        for s_ in range(1, 4):
            k(f"v_xor_b32 v6, s{sTF}, v{33+4*s_}\nv_xor_b32 v7, s{sTF}, v{35+4*s_}\nv_or3_b32 v4, v4, v6, v7")
        k("v_or_b32 v4, v4, v5\nv_cmp_ne_u32 vcc, 0, v4")
        k(f"s_cbranch_vccz {dn}\ns_sub_u32 s84, s84, 1\ns_cbranch_scc0 {lp}")
        k(f"{dn}:")
        k("v_add_f32 v4, v32, v36\nv_add_f32 v5, v34, v38\nv_add_f32 v6, v40, v44\nv_add_f32 v7, v42, v46\nv_add_f32 v4, v4, v6\nv_add_f32 v5, v5, v7")
        k("v_cvt_pk_bf16_f32 v4, v4, v5")
        k(f"v_bfe_u32 v5, v{LANE}, 1, 4\nv_lshlrev_b32 v5, 2, v5\nv_lshrrev_b32 v6, 5, v{LANE}\nv_lshl_add_u32 v5, v6, 1, v5\nv_and_b32 v6, 1, v{LANE}\nv_add_u32 v5, v5, v6\nv_lshlrev_b32 v5, 2, v5")
        k(f"ds_write_b32 v5, v4 offset:{L_Q}")
        if w0split is not None:
            for tb in range(w0split, early): issue_block(tb, track=False)
        k("s_waitcnt lgkmcnt(0)")
    else:
        k(f"s_cmp_eq_u32 s3, {0 if not noq else 99}\ns_cbranch_scc1 {ctl}")
        if bar_a: k("s_barrier")
        k(f"s_cmp_gt_u32 s3, {elast}\ns_cbranch_scc1 {jq}")
        if w0late: k(f"s_cmp_eq_u32 s3, {wlate}\ns_cbranch_scc1 {jq}")
        nfree = 0 if ewin is None else (ewin + 4) // 4
        for tb in range(early):
            if eb1 is not None and tb == eb1: k("s_barrier")
            if ewin is not None and tb >= nfree: k(f"s_waitcnt vmcnt({ewin})")
            issue_block(tb, track=False)
        k(f"s_branch {jq}")
        k(f"{ctl}:")
        k(f"s_lshl_b32 s65, s{sB}, 10\ns_add_u32 s40, s4, s65\ns_addc_u32 s41, s5, 0\ns_and_b32 s41, s41, 0xffff\ns_mov_b32 s42, 1024\ns_mov_b32 s43, 0x20000")
        srd(k, 32, 10, 11, 4 << 20)
        k(f"buffer_load_dwordx4 v[4:7], v{VOFF}, s[40:43], 0 offen")
        k(f"v_lshlrev_b32 v17, 6, v16\ns_lshl_b32 s67, s{sSPL}, 8")
        for q in range(4): k(f"buffer_load_dwordx4 v[{32+4*q}:{35+4*q}], v17, s[40:43], s67 offen offset:{16*q}")
        k("v_lshlrev_b32 v18, 18, v16\nv_lshl_add_u32 v18, v19, 4, v18")
        k(f"s_lshl_b32 s68, s{sSPL}, 20\ns_lshl_b32 s69, s{sH}, 8\ns_add_u32 s68, s68, s69")
        WQR = lambda n: (RING + 4*n) if n < 16 else (WO + 4*(n-16))
        for n in range(32):
            k(f"buffer_load_dwordx4 v[{WQR(n)}:{WQR(n)+3}], v18, s[32:35], s68 offen")
            if n < 31: k("s_add_u32 s68, s68, 8192")
        if bar_a: k("s_barrier")
        srd(k, 44, 14, 15, 2 << 20)
        sparse_masks(k, MK, LANE, 20)
        k("s_waitcnt vmcnt(36)")
        unpack8(k, 24, 4)
        k("s_nop 0")
        ln_stats1(k, 24, 20, 21, 22, 8, 65)
        k("s_waitcnt vmcnt(32)")
        for hlf in range(2):
            unpack8(k, 4, 32 + 8*hlf); unpack8(k, 12, 36 + 8*hlf)
            ln_apply(k, 4, 16, 20, 21, 23, 22, refine=False)
            for q in range(8): k(f"v_cvt_pk_bf16_f32 v{48+8*hlf+q}, v{4+2*q}, v{4+2*q+1}")
        k("s_mov_b32 s70, 0x01000100\ns_mov_b32 s71, 0x03020302")
        for n in range(32):
            if n % 4 == 0: k(f"s_waitcnt vmcnt({28 - n})")
            a = AS + (n % 4) * 4
            k(f"v_perm_b32 v22, v{48 + n//2}, v{48 + n//2}, s{70 + (n & 1)}")
            for q in range(4): k(f"v_and_b32 v{a+q}, v22, v{MK+q}")
            k("s_nop 1")
            acc = ACC + 4 * (n & 1)
            src_c = "0" if n < 2 else f"v[{acc}:{acc+3}]"
            k(f"v_mfma_f32_16x16x32_bf16 v[{acc}:{acc+3}], v[{a}:{a+3}], v[{WQR(n)}:{WQR(n)+3}], {src_c}")
        st(3, "pro")
        k("s_waitcnt lgkmcnt(0)")
        k(f"s_add_u32 s{sTF}, s{sE}, 1")
        k(f"v_lshlrev_b32 v12, 5, v{LANE}\ns_lshl_b32 s65, s2, 10\ns_add_u32 s65, s65, {W_QP}")
        k(f"v_mov_b32 v5, s{sTF}\nv_mov_b32 v7, s{sTF}\nv_mov_b32 v9, s{sTF}\nv_mov_b32 v11, s{sTF}")
        k("s_nop 0")
        k(f"v_add_f32 v4, v{ACC}, v{ACC+4}\nv_add_f32 v6, v{ACC+1}, v{ACC+5}\nv_add_f32 v8, v{ACC+2}, v{ACC+6}\nv_add_f32 v10, v{ACC+3}, v{ACC+7}")
        k(f"v_cmp_gt_u32 vcc, 32, v{LANE}\ns_and_saveexec_b64 s[82:83], vcc")
        k("buffer_store_dwordx4 v[4:7], v12, s[44:47], s65 offen sc1\nbuffer_store_dwordx4 v[8:11], v12, s[44:47], s65 offen offset:16 sc1")
        k("s_mov_b64 exec, s[82:83]")
        for tb in range(w0pf): issue_block(tb, track=False)
        k(f"s_and_b32 s66, s2, 63\ns_lshl_b32 s66, s66, 10\ns_add_u32 s66, s66, {W_QP}")
        lp = k.label("qp"); dn = k.label("qd"); ck = k.label("qc")
        def qpoll():
            for s_ in range(4):
                k(f"buffer_load_dwordx4 v[{32+4*s_}:{35+4*s_}], v{VOFF}, s[44:47], s66 offen sc1")
                if s_ < 3: k("s_add_u32 s66, s66, 65536")
            k(f"s_sub_u32 s66, s66, {3*65536}")
        k(f"s_mov_b32 s84, {SPIN}")
        if eb1 is not None:
            if ackwait: k("s_waitcnt vmcnt(0)")
            qpoll()
            k("s_barrier")
            k(f"s_branch {ck}")
        k(f"{lp}:")
        qpoll()
        k(f"{ck}:")
        k("s_waitcnt vmcnt(0)")
        k(f"v_xor_b32 v4, s{sTF}, v33\nv_xor_b32 v5, s{sTF}, v35")
        for s_ in range(1, 4):
            k(f"v_xor_b32 v6, s{sTF}, v{33+4*s_}\nv_xor_b32 v7, s{sTF}, v{35+4*s_}\nv_or3_b32 v4, v4, v6, v7")
        k("v_or_b32 v4, v4, v5\nv_cmp_ne_u32 vcc, 0, v4")
        k(f"s_cbranch_vccz {dn}\ns_sub_u32 s84, s84, 1\ns_cbranch_scc0 {lp}")
        k(f"{dn}:")
        k("v_add_f32 v4, v32, v36\nv_add_f32 v5, v34, v38\nv_add_f32 v6, v40, v44\nv_add_f32 v7, v42, v46\nv_add_f32 v4, v4, v6\nv_add_f32 v5, v5, v7")
        k("v_cvt_pk_bf16_f32 v4, v4, v5")
        k(f"v_bfe_u32 v5, v{LANE}, 1, 4\nv_lshlrev_b32 v5, 2, v5\nv_lshrrev_b32 v6, 5, v{LANE}\nv_lshl_add_u32 v5, v6, 1, v5\nv_and_b32 v6, 1, v{LANE}\nv_add_u32 v5, v5, v6\nv_lshlrev_b32 v5, 2, v5")
        k(f"ds_write_b32 v5, v4 offset:{L_Q}\ns_waitcnt lgkmcnt(0)")
    k(f"{jq}:")
    if qdelay:
        dl = k.label("dl"); dd = k.label("dd")
        k(f"s_cmp_lg_u32 s3, 0\ns_cbranch_scc1 {dd}")
        k(f"{dl}:\ns_memrealtime s[84:85]\ns_waitcnt lgkmcnt(0)\ns_sub_u32 s84, s84, s{SB}\ns_cmp_lt_u32 s84, {qdelay}\ns_cbranch_scc1 {dl}")
        k(f"{dd}:")
    st(1, "pro")
    k("s_barrier")
    st(2, "pro"); st(2, "dbg")
    k(f"v_lshrrev_b32 v16, 4, v{LANE}\nv_and_b32 v19, 15, v{LANE}\nv_lshlrev_b32 v24, 4, v19")
    if noq == 2:
        srd(k, 32, 10, 11, 4 << 20)
        k(f"s_lshl_b32 s65, s{sH}, 8")
        k(f"buffer_load_dwordx4 v[{Q}:{Q+3}], v24, s[32:35], s65 offen\ns_waitcnt vmcnt(0)")
    else:
        k(f"ds_read_b128 v[{Q}:{Q+3}], v24 offset:{L_Q}")
    w0 = k.label("w0")
    if not pro4:
        if noq and w0late: k(f"s_cmp_lg_u32 s3, {wlate}\ns_cbranch_scc1 {w0}")
        else: k(f"s_sub_u32 s65, s3, {1 if not noq else 0}\ns_cmp_lt_u32 s65, {elast if not noq else elast+1}\ns_cbranch_scc1 {w0}")
        for tb in range(w0pf, early): issue_block(tb, track=False)
        k(f"{w0}:")
    for tb in range(early):
        for c in range(4): vm.load(f"b{tb}")
    for tb in range(early, ninit): issue_block(tb)
    srd(k, 36, 12, 13, 4 << 20)
    srd(k, 44, 14, 15, 2 << 20)
    def roles(W):
        if evenffn:
            k(f"s_and_b32 s65, s{W}, 1\ns_lshr_b32 s87, s{W}, 1\ns_mov_b32 s85, 0")
            k(f"s_cmp_lt_u32 s{W}, 224\ns_cselect_b32 s66, 1, 0\ns_cmp_eq_u32 s65, 0\ns_cselect_b32 s85, s66, 0")
            if redcls is None:
                k(f"s_cmp_ge_u32 s{W}, 192\ns_cselect_b32 s66, 2, 0\ns_cmp_eq_u32 s65, 1\ns_cselect_b32 s85, s66, s85")
                k("s_sub_u32 s66, s87, 96\ns_cmp_eq_u32 s85, 2\ns_cselect_b32 s87, s66, s87")
            else:
                k(f"s_and_b32 s66, s{W}, 7\ns_cmp_eq_u32 s66, {redcls}\ns_cselect_b32 s85, 2, s85\ns_lshr_b32 s66, s{W}, 3\ns_cmp_eq_u32 s85, 2\ns_cselect_b32 s87, s66, s87")
        else:
            k(f"s_mov_b32 s85, 0\ns_mov_b32 s87, s{W}")
            k(f"s_cmp_lt_u32 s{W}, 112\ns_cselect_b32 s85, 1, 0")
            k(f"s_sub_u32 s66, s{W}, 224\ns_cmp_ge_u32 s{W}, 224\ns_cselect_b32 s85, 2, s85\ns_cselect_b32 s87, s66, s87")
        k("s_cmp_eq_u32 s85, 1")
        k(f"s_cselect_b32 s50, {512*3584}, 0\ns_cselect_b32 s58, {1792*1024}, 0")
        k("s_mov_b32 s48, s16\ns_and_b32 s49, s17, 0xffff\ns_mov_b32 s51, 0x20000")
        k("s_mov_b32 s52, s18\ns_and_b32 s53, s19, 0xffff\ns_mov_b32 s54, s50\ns_mov_b32 s55, 0x20000")
        k("s_mov_b32 s56, s20\ns_and_b32 s57, s21, 0xffff\ns_mov_b32 s59, 0x20000")
        if evenffn:
            k(f"s_bfe_u32 s65, s{W}, 0x20001\ns_mul_i32 s65, s65, 28\ns_lshr_b32 s66, s{W}, 3\ns_add_u32 s73, s65, s66")
        else:
            k(f"s_lshr_b32 s65, s{W}, 5\ns_bfe_u32 s66, s{W}, 0x20003\ns_and_b32 s67, s{W}, 7")
            k("s_lshl_b32 s68, s67, 2\ns_add_u32 s68, s68, s66\ns_lshl_b32 s69, s65, 5\ns_add_u32 s68, s68, s69")
            k("s_lshl_b32 s69, s67, 1\ns_add_u32 s69, s69, s66\ns_add_u32 s69, s69, 96")
            k(f"s_cmp_ge_u32 s{W}, 96\ns_cselect_b32 s73, s69, s68")
        k(f"v_lshrrev_b32 v20, 1, v{LANE}\nv_and_b32 v21, 1, v{LANE}\ns_mov_b32 s65, 3584\nv_mul_lo_u32 v{X+4}, v20, s65\nv_lshl_add_u32 v{X+4}, v21, 4, v{X+4}")
        k(f"s_mul_i32 s74, s3, {64*3584}\ns_lshl_b32 s65, s73, 5\ns_add_u32 s74, s74, s65")
        k("s_lshl_b32 s75, s73, 14\ns_lshl_b32 s65, s3, 11\ns_add_u32 s75, s75, s65")
    if not par: roles(2)
    if l2pf is not None:
        pass
    sparse_masks(k, MK, LANE, 20)
    k("s_mov_b32 s70, 0x01000100\ns_mov_b32 s71, 0x03020302")
    k(f"v_lshlrev_b32 v{X}, 5, v19\nv_and_b32 v25, 1, v16\nv_lshl_add_u32 v{X}, v25, 4, v{X}\ns_lshl_b32 s65, s3, 9\nv_add_u32 v{X}, s65, v{X}")
    k("s_waitcnt lgkmcnt(0)")
    k(f"s_add_u32 s{sTF}, s{sE}, 1\ns_and_b32 s{sT10}, s{sTF}, 0x3ff\ns_and_b32 s{sT16}, s{sTF}, 0xffff")
    k(f"s_mov_b32 s{sSC}, 0x3db504f3\ns_mov_b32 s{sL2E}, {LOG2E:#x}")
    k(f"v_lshrrev_b32 v{X+1}, 4, v{LANE}\nv_and_b32 v{X+2}, 15, v{LANE}")
    k(f"v_lshlrev_b32 v{X+3}, 12, v{X+1}\nv_lshl_add_u32 v{X+3}, v{X+2}, 4, v{X+3}")
    k(f"s_lshl_b32 s72, s{sH}, 17\ns_lshl_b32 s65, s3, 14\ns_add_u32 s72, s72, s65")
    if wopf is not None:
        k(f"s_lshr_b32 s65, s2, 5\ns_lshr_b32 s66, s65, 1\ns_lshl_b32 s66, s66, 12\ns_and_b32 s65, s65, 1\ns_lshl_b32 s65, s65, 7\ns_add_u32 s63, s72, s66\ns_add_u32 s63, s63, s65\nv_mov_b32 v{X+15}, 0")
    if l2pf is not None:
        k(f"v_and_b32 v4, 3, v{LANE}\nv_lshrrev_b32 v5, 2, v{LANE}\ns_and_b32 s65, s2, 7\ns_lshr_b32 s66, s2, 3\ns_lshl_b32 s66, s66, 4")
        k(f"v_add_u32 v5, s66, v5\ns_mov_b32 s66, 3584\nv_mul_lo_u32 v5, v5, s66")
        k(f"v_lshlrev_b32 v6, 3, v4\nv_add_u32 v6, s65, v6\nv_lshlrev_b32 v6, 7, v6\ns_lshr_b32 s65, s65, 1\ns_lshl_b32 s65, s65, 7\ns_add_u32 s65, s65, 3072\nv_mov_b32 v7, s65")
        k(f"v_cmp_eq_u32 vcc, 3, v4\ns_nop 1\nv_cndmask_b32 v6, v6, v7, vcc\nv_add_u32 v{X+12}, v5, v6")
        k("s_cmp_eq_u32 s3, 5\ns_cselect_b32 s8, s18, s16\ns_cselect_b32 s9, s19, s17\ns_and_b32 s9, s9, 0xffff")
        k(f"s_sub_u32 s65, s3, 4\ns_cmp_lt_u32 s65, 2\ns_cselect_b32 s10, {512*3584}, 0\ns_mov_b32 s11, 0x20000")
    def extra_loads(tb):
        if 8 <= tb < 24:
            u = tb - 8; n, cb = divmod(u, 4)
            if "nowo" not in exp:
                k(f"s_add_u32 s65, s72, {n*1024}")
                k(f"buffer_load_dwordx4 v[{WO+4*u}:{WO+4*u+3}], v{X+3}, s[36:39], s65 offen offset:{cb*256} {wflags}")
                vm.load("wo")
        if wopf is not None and 0 <= tb + wopf - 8 < 16:
            u = tb + wopf - 8; n, cb = divmod(u, 4)
            k(f"s_add_u32 s65, s63, {n*1024 + cb*256}")
            k("s_mov_b64 exec, 1")
            k(f"buffer_load_dword v{X+14}, v{X+15}, s[36:39], s65 offen")
            k("s_mov_b64 exec, -1")
            vm.load("wopf")
        if 24 <= tb < 26:
            t = tb - 24
            k(f"s_lshl_b32 s65, s3, 11\ns_add_u32 s65, s65, {L_WD + t*1024}\ns_mov_b32 m0, s65")
            k(f"s_add_u32 s65, s75, {t*1024}")
            k(f"buffer_load_dwordx4 v{VOFF}, s[56:59], s65 offen {wflags} lds")
            vm.load("wd")
        if par and tb == 9:
            k(f"v_mov_b32 v{X+5}, 0")
            k(f"buffer_load_dwordx4 v[{X+6}:{X+9}], v{X+5}, s[44:47], 0 offen offset:{W_PAR} sc1")
            vm.load("par")
        if l2pf is not None and tb == l2pf:
            k(f"buffer_load_dword v{X+13}, v{X+12}, s[8:11], 0 offen")
            vm.load("pf")
    st(1); st(4, "pro")
    MX, LS, NEGM, D = 4, 5, 6, 8
    k(f"v_mov_b32 v{MX}, 0xff800000")
    for tb in range(16):
        vm.wait(f"b{tb}")
        prog(tb)
        for c in range(4):
            r = breg(tb, c)
            k(f"v_dot2_f32_bf16 v{D+c}, v{r}, v{Q}, 0")
        for q in range(1, 4):
            for c in range(4):
                r = breg(tb, c)
                k(f"v_dot2_f32_bf16 v{D+c}, v{r+q}, v{Q+q}, v{D+c}")
        if next_issue(tb) is not None: issue_block(next_issue(tb))
        else: k("s_nop 2")
        extra_loads(tb)
        for n in (8, 4, 2, 1):
            for c in range(4):
                k(f"v_add_f32_dpp v{D+c}, v{D+c}, v{D+c} row_ror:{n} row_mask:0xf bank_mask:0xf")
        k(f"v_cvt_pk_bf16_f32 v{D+4}, v{D}, v{D+1}")
        k(f"v_cvt_pk_bf16_f32 v{D+5}, v{D+2}, v{D+3}")
        k(f"v_lshlrev_b32 v{D}, 16, v{D+4}\nv_and_b32 v{D+1}, 0xffff0000, v{D+4}")
        k(f"v_lshlrev_b32 v{D+2}, 16, v{D+5}\nv_and_b32 v{D+3}, 0xffff0000, v{D+5}")
        for c in range(4): k(f"v_mul_f32 v{D+c}, s{sSC}, v{D+c}")
        k(f"v_cvt_pk_bf16_f32 v{SP+2*tb}, v{D}, v{D+1}")
        k(f"v_cvt_pk_bf16_f32 v{SP+2*tb+1}, v{D+2}, v{D+3}")
        k(f"v_max3_f32 v{MX}, v{MX}, v{D}, v{D+1}")
        k(f"v_max3_f32 v{MX}, v{MX}, v{D+2}, v{D+3}")
    if par:
        vm.wait("par")
        pok = k.label("pok"); plp = k.label("plp")
        def par_check():
            k(f"v_and_b32 v20, 0xffff, v{X+6}\nv_xor_b32 v20, s{sT16}, v20\nv_xor_b32 v21, s{sTF}, v{X+7}\nv_xor_b32 v22, s{sTF}, v{X+8}\nv_xor_b32 v23, s{sTF}, v{X+9}")
            k("v_or3_b32 v20, v20, v21, v22\nv_or_b32 v20, v20, v23\nv_cmp_ne_u32 vcc, 0, v20")
        par_check()
        k(f"s_cbranch_vccz {pok}\ns_mov_b32 s84, {SPIN}")
        k(f"{plp}:")
        k(f"s_sleep 4\nbuffer_load_dwordx4 v[{X+6}:{X+9}], v{X+5}, s[44:47], 0 offen offset:{W_PAR} sc1\ns_waitcnt vmcnt(0)")
        par_check()
        k(f"s_cbranch_vccz {pok}\ns_sub_u32 s84, s84, 1\ns_cbranch_scc0 {plp}")
        k(f"{pok}:")
        k(f"v_readfirstlane_b32 s63, v{X+6}\ns_nop 3\ns_bfe_u32 s63, s63, 0x10010\ns_xor_b32 s63, s63, s2")
        roles(63)
    rows_reduce(k, "v_max_f32", MX, 7)
    bf16r(k, MX)
    k(f"v_mul_f32 v{NEGM}, s{sL2E}, v{MX}\nv_sub_f32 v{NEGM}, 0, v{NEGM}\nv_mov_b32 v{LS}, 0")
    st(2); st(3, "b0")
    for u in range(0, 32, 2):
        k(f"v_lshlrev_b32 v{D}, 16, v{SP+u}\nv_and_b32 v{D+1}, 0xffff0000, v{SP+u}")
        k(f"v_lshlrev_b32 v{D+2}, 16, v{SP+u+1}\nv_and_b32 v{D+3}, 0xffff0000, v{SP+u+1}")
        for c in range(4): k(f"v_fma_f32 v{D+c}, v{D+c}, s{sL2E}, v{NEGM}")
        for c in range(4): k(f"v_exp_f32 v{D+c}, v{D+c}")
        k("s_nop 0")
        k(f"v_cvt_pk_bf16_f32 v{SP+u}, v{D}, v{D+1}")
        k(f"v_cvt_pk_bf16_f32 v{SP+u+1}, v{D+2}, v{D+3}")
        k(f"v_add_f32 v{D}, v{D}, v{D+1}\nv_add_f32 v{D+2}, v{D+2}, v{D+3}\nv_add_f32 v{LS}, v{LS}, v{D}\nv_add_f32 v{LS}, v{LS}, v{D+2}")
    rows_reduce(k, "v_add_f32", LS, 7)
    k(f"s_and_b32 s65, s2, 63\ns_lshl_b32 s86, s65, 9\ns_add_u32 s86, s86, {W_ML}")
    k(f"s_lshl_b32 s65, s{sSPL}, 3\ns_add_u32 s65, s65, s3\ns_lshl_b32 s65, s65, 4\ns_add_u32 s65, s65, s86")
    k(f"v_or_b32 v{D}, s{sT16}, v{MX}")
    k(f"v_and_b32 v{D+1}, 0xfffffc00, v{LS}\nv_or_b32 v{D+1}, s{sT10}, v{D+1}")
    k(f"v_mov_b32 v{D+2}, s{sTF}\nv_mov_b32 v{D+3}, s{sTF}\nv_mov_b32 v{D+4}, 0")
    k("s_mov_b64 exec, 1")
    k(f"buffer_store_dwordx4 v[{D}:{D+3}], v{D+4}, s[44:47], s65 offen sc1")
    k("s_mov_b64 exec, -1")
    for q in range(8): k(f"v_mov_b32 v{ACC+q}, 0")
    st(3)
    def vblock(tb):
        u = (tb - 16) * 2
        for c in range(4):
            k(f"v_perm_b32 v{D+c}, v{SP+u+c//2}, v{SP+u+c//2}, s{70 + (c & 1)}")
        for c in range(4):
            for q in range(4): k(f"v_and_b32 v{AS+4*c+q}, v{D+c}, v{MK+q}")
        vm.wait(f"b{tb}")
        prog(tb)
        for c in range(4):
            r = RING + ((tb * 4 + c) % 16) * 4
            acc = ACC + 4 * (c & 1)
            k(f"v_mfma_f32_16x16x32_bf16 v[{acc}:{acc+3}], v[{AS+4*c}:{AS+4*c+3}], v[{r}:{r+3}], v[{acc}:{acc+3}]")
        if next_issue(tb) is not None: issue_block(next_issue(tb))
        extra_loads(tb)
    for tb in range(16, b0at): vblock(tb)

    TA = SP
    aOG, aPW, aT16 = TA, TA + 1, TA + 2
    R0 = TA + 3
    red = k.label("red"); ffn = k.label("ffn"); fin = k.label("fin")
    sR0 = 6
    k(f"v_lshlrev_b32 v{aOG}, 4, v{X+1}\ns_lshl_b32 s65, s3, 6\nv_add_u32 v{aOG}, s65, v{aOG}")
    k(f"v_lshlrev_b32 v{aPW}, 4, v{LANE}\ns_lshl_b32 s65, s3, 11\ns_add_u32 s65, s65, {L_P}\nv_add_u32 v{aPW}, s65, v{aPW}")
    k(f"v_lshlrev_b32 v{aT16}, 4, v0")
    aPS = X + 12 if colord else aT16
    if colord:
        k(f"v_and_b32 v20, 15, v0\nv_lshlrev_b32 v20, 1, v20\nv_bfe_u32 v21, v0, 4, 1\nv_or_b32 v20, v20, v21\nv_and_b32 v21, 0xe0, v0\nv_or_b32 v20, v20, v21\nv_lshlrev_b32 v{aPS}, 4, v20")
    k(f"s_lshl_b32 s7, s2, 11\ns_add_u32 s7, s7, {W_P}")
    srd(k, 40, 4, 5, 2048)
    srd(k, 32, 22, 23, 2048)
    su_f = k.label("suf"); su_d = k.label("sud")
    k(f"s_cmp_eq_u32 s85, 1\ns_cbranch_scc1 {su_f}\ns_cmp_eq_u32 s85, 0\ns_cbranch_scc1 {su_d}")
    rPV, rFV0, rFV1, rLW, rLR, rXO, rHV, rX = R0, R0+1, R0+2, R0+3, R0+4, R0+5, R0+6, R0+7
    k("s_lshr_b32 s67, s87, 4\ns_and_b32 s68, s87, 15")
    k(f"v_lshrrev_b32 v20, 3, v{LANE}\nv_and_b32 v21, 7, v{LANE}")
    k(f"v_lshlrev_b32 v{rPV}, 11, v20\nv_lshl_add_u32 v{rPV}, v21, 4, v{rPV}")
    k(f"v_lshlrev_b32 v{rFV0}, 12, v20\nv_lshl_add_u32 v{rFV0}, v21, 4, v{rFV0}")
    k(f"v_cmp_gt_u32 vcc, 6, v20\nv_add_u32 v{rFV1}, 32768, v{rFV0}\ns_nop 0\nv_cndmask_b32 v{rFV1}, v{rFV0}, v{rFV1}, vcc")
    k(f"v_lshrrev_b32 v22, 1, v{X+1}\nv_and_b32 v23, 1, v{X+1}\nv_lshl_add_u32 v22, v23, 1, v22\nv_lshlrev_b32 v22, 2, v22\nv_lshl_add_u32 v{rLW}, v21, 4, v22\ns_lshl_b32 s65, s3, 7\nv_add_u32 v{rLW}, s65, v{rLW}")
    k(f"v_and_b32 v22, 31, v{LANE}\nv_lshlrev_b32 v{rLR}, 2, v22\nv_mov_b32 v{rHV}, v{rLR}")
    if colord:
        k(f"s_lshl_b32 s65, s68, 5\nv_add_u32 v24, s65, v22")
    else:
        k(f"v_lshrrev_b32 v23, 2, v22\ns_lshl_b32 s65, s68, 3\nv_add_u32 v23, s65, v23")
        k(f"v_lshrrev_b32 v24, 5, v23\nv_lshlrev_b32 v24, 7, v24\nv_and_b32 v25, 15, v23\nv_lshl_add_u32 v24, v25, 3, v24\nv_bfe_u32 v25, v23, 4, 1\nv_lshl_add_u32 v24, v25, 2, v24\nv_and_b32 v25, 3, v22\nv_add_u32 v24, v24, v25")
    k(f"v_lshlrev_b32 v24, 1, v24\ns_lshl_b32 s65, s67, 10\nv_add_u32 v{rXO}, s65, v24")
    k(f"buffer_load_ushort v{rX}, v{rXO}, s[40:43], 0 offen"); vm.load("rx")
    if tlbwarm:
        tw2 = k.label("tw")
        k(f"s_cmp_lg_u32 s3, 0\ns_cbranch_scc1 {tw2}")
        k(f"buffer_load_ushort v{X+13}, v{rXO}, s[32:35], 0 offen")
        k(f"{tw2}:")
    k(f"s_lshr_b32 s65, s3, 1\ns_lshl_b32 s65, s65, 6\ns_lshl_b32 s69, s67, 5\ns_add_u32 s65, s65, s69\ns_and_b32 s69, s3, 1\ns_lshl_b32 s69, s69, 4\ns_add_u32 s65, s65, s69")
    k(f"s_lshl_b32 s65, s65, 11\ns_lshl_b32 s69, s68, 7\ns_add_u32 s65, s65, s69\ns_add_u32 s12, s65, {W_P}\ns_add_u32 s13, s12, 16384")
    k(f"s_mul_i32 s65, s3, {14*4096}\ns_lshl_b32 s16, s67, 11\ns_add_u32 s65, s65, s16\ns_add_u32 s65, s65, s69\ns_add_u32 s17, s65, {W_F}")
    k(f"s_add_u32 s16, s16, s69\ns_add_u32 s16, s16, {W_H}")
    k(f"s_branch {su_d}")
    k(f"{su_f}:")
    fTR, fWD, fHW, fAF, fGW, fGR, fOW, fOR = R0, R0+1, R0+2, R0+3, R0+4, R0+5, R0+6, R0+7
    k(f"v_lshrrev_b32 v20, 2, v{X+2}\nv_and_b32 v21, 3, v{X+2}")
    k(f"v_lshl_add_u32 v20, v{X+1}, 3, v20\nv_lshlrev_b32 v20, 5, v20\nv_lshl_add_u32 v20, v21, 3, v20\ns_lshl_b32 s65, s3, 12\ns_add_u32 s65, s65, {L_GU}\nv_add_u32 v{fTR}, s65, v20")
    k(f"v_lshlrev_b32 v20, 10, v{X+1}\nv_lshl_add_u32 v20, v{X+2}, 4, v20\ns_lshr_b32 s65, s3, 2\ns_lshl_b32 s65, s65, 13\ns_and_b32 s69, s3, 3\ns_lshl_b32 s69, s69, 8\ns_add_u32 s65, s65, s69\ns_add_u32 s65, s65, {L_WD}\nv_add_u32 v{fWD}, s65, v20")
    if colord:
        k(f"v_lshlrev_b32 v20, 3, v{LANE}\ns_lshl_b32 s65, s3, 10\ns_add_u32 s65, s65, {L_HN}\nv_add_u32 v{fHW}, s65, v20")
    else:
        k(f"v_lshrrev_b32 v20, 5, v{LANE}\nv_lshlrev_b32 v20, 7, v20\nv_lshl_add_u32 v20, v{X+2}, 3, v20\nv_and_b32 v21, 1, v{X+1}\nv_lshl_add_u32 v20, v21, 2, v20")
        k(f"v_lshlrev_b32 v20, 1, v20\ns_lshl_b32 s65, s3, 10\ns_add_u32 s65, s65, {L_HN}\nv_add_u32 v{fHW}, s65, v20")
    k(f"v_and_b32 v20, 1, v{LANE}\nv_lshlrev_b32 v20, 10, v20\nv_lshl_add_u32 v20, v{X+1}, 4, v20\ns_lshl_b32 s65, s3, 7\ns_add_u32 s65, s65, {L_HN}\nv_add_u32 v{fAF}, s65, v20")
    k(f"s_mov_b32 s65, 144\nv_mul_lo_u32 v20, v{LANE}, s65\ns_lshl_b32 s65, s3, 3\ns_add_u32 s65, s65, {L_G}\nv_add_u32 v{fGW}, s65, v20")
    k(f"s_lshr_b32 s65, s3, 2\ns_lshl_b32 s65, s65, 3\nv_add_u32 v20, s65, v{X+1}\ns_mov_b32 s65, 144\nv_mul_lo_u32 v20, v20, s65\nv_lshrrev_b32 v21, 3, v{X+2}\nv_lshl_add_u32 v20, v21, 6, v20\nv_add_u32 v{fGR}, {L_G}, v20")
    k(f"v_lshlrev_b32 v20, 4, v{LANE}\ns_lshl_b32 s65, s3, 10\ns_add_u32 s65, s65, {L_P}\nv_add_u32 v{fOW}, s65, v20")
    k(f"v_lshrrev_b32 v20, 7, v0\nv_and_b32 v21, 127, v0\nv_lshrrev_b32 v22, 5, v21\nv_and_b32 v21, 31, v21\nv_lshl_add_u32 v21, v20, 5, v21\nv_lshlrev_b32 v21, 4, v21\nv_lshl_add_u32 v21, v22, 10, v21\nv_add_u32 v{fOR}, {L_P}, v21")
    if tlbwarm:
        tw = k.label("tw")
        k(f"s_cmp_lg_u32 s3, 7\ns_cbranch_scc1 {tw}")
        k(f"v_lshlrev_b32 v20, 16, v{LANE}")
        k(f"buffer_load_dword v{X+13}, v20, s[48:51], 0 offen\nbuffer_load_dword v{X+14}, v20, s[52:55], 0 offen")
        k(f"{tw}:")
    k(f"s_lshl_b32 s12, s3, 11\ns_add_u32 s12, s12, {W_H}\ns_add_u32 s13, s12, 1024")
    k(f"s_lshl_b32 s16, s87, 12\ns_add_u32 s16, s16, {W_F}")
    k(f"{su_d}:")
    vm.load("rx")
    vm.q.remove("rx"); vm.q.remove("rx")
    st(1, "b0")
    k("s_barrier")
    st(2, "b0")
    G = X + 6
    k(f"v_and_b32 v{X+5}, 31, v{LANE}\nv_lshlrev_b32 v{X+5}, 4, v{X+5}")
    k(f"buffer_load_dwordx4 v[{G}:{G+3}], v{X+5}, s[44:47], s86 offen sc1"); vm.load("ml")
    for tb in range(b0at, 30): vblock(tb)
    vm.wait("ml")
    def ml_check():
        k(f"v_and_b32 v12, 0xffff, v{G}\nv_and_b32 v13, 0x3ff, v{G+1}")
        k(f"v_cmp_ne_u32 s[68:69], s{sT16}, v12\nv_cmp_ne_u32 vcc, s{sT10}, v13\ns_or_b64 s[68:69], s[68:69], vcc")
        k(f"v_cmp_ne_u32 vcc, s{sTF}, v{G+2}\ns_or_b64 s[68:69], s[68:69], vcc\nv_cmp_ne_u32 vcc, s{sTF}, v{G+3}\ns_or_b64 s[68:69], s[68:69], vcc")
    ml_check()
    mlok = k.label("mlok"); mlp = k.label("mlp")
    k(f"s_cmp_eq_u64 s[68:69], 0\ns_cbranch_scc1 {mlok}")
    k(f"s_mov_b32 s84, {SPIN}")
    k(f"{mlp}:")
    if mlsleep: k(f"s_sleep {mlsleep}")
    k(f"buffer_load_dwordx4 v[{G}:{G+3}], v{X+5}, s[44:47], s86 offen sc1\ns_waitcnt vmcnt(0)")
    ml_check()
    k(f"s_cmp_eq_u64 s[68:69], 0\ns_cbranch_scc1 {mlok}\ns_sub_u32 s84, s84, 1\ns_cbranch_scc0 {mlp}")
    k(f"{mlok}:")
    k(f"v_and_b32 v12, 0xffff0000, v{G}\nv_and_b32 v13, 0xfffffc00, v{G+1}\nv_mov_b32 v14, v12")
    allreduce(k, "v_max_f32", 14, 7)
    k(f"v_sub_f32 v12, v12, v14\nv_mul_f32 v12, s{sL2E}, v12\nv_exp_f32 v12, v12\ns_nop 0\nv_mul_f32 v13, v13, v12")
    for n in (8, 4, 2, 1): k(f"s_nop 1\nv_add_f32_dpp v13, v13, v13 row_ror:{n} row_mask:0xf bank_mask:0xf")
    k("v_mov_b32 v7, v13\ns_nop 1\nv_permlane16_swap_b32 v13, v7\nv_add_f32 v13, v13, v7")
    k(f"v_sub_f32 v12, v{MX}, v14\nv_mul_f32 v12, s{sL2E}, v12\nv_exp_f32 v12, v12\nv_rcp_f32 v15, v13\ns_nop 0")
    k(f"v_mul_f32 v14, v12, v15\nv_fma_f32 v12, -v14, v13, v12\nv_fma_f32 v{X+10}, v12, v15, v14")
    MSK = X + 11
    k(f"v_mov_b32 v{MSK}, 0xfffffc00")
    vblock(30); vblock(31)
    k(f"v_cmp_gt_u32 vcc, 32, v{LANE}")
    k("s_nop 6")
    for q in range(4): k(f"v_add_f32 v{ACC+q}, v{ACC+q}, v{ACC+4+q}")
    for q in range(4): k(f"v_mul_f32 v{ACC+q}, v{ACC+q}, v{X+10}")
    st(4); st(5, "pro")
    k("s_and_saveexec_b64 s[82:83], vcc")
    k(f"ds_write_b128 v{X}, v[{ACC}:{ACC+3}]")
    k("s_mov_b64 exec, s[82:83]")
    vm.drain()
    st(1, "pp")
    k("s_waitcnt lgkmcnt(0)\ns_barrier")
    st(2, "pp")
    for w in range(8): k(f"ds_read_b128 v[{RING+4*w}:{RING+4*w+3}], v{aOG} offset:{L_O + w*512}")
    sum8x4(RING)
    for n in range(4): k(f"v_cvt_pk_bf16_f32 v{D+n}, v{RING+n}, v{RING+n}")
    PA = RING + 32
    for n in range(4):
        for q in range(4): k(f"v_and_b32 v{AS+4*n+q}, v{D+n}, v{MK+q}")
    for n in range(4):
        if n == 3: pass
        for cb in range(4):
            src_c = "0" if n == 0 else f"v[{PA+4*cb}:{PA+4*cb+3}]"
            k(f"v_mfma_f32_16x16x32_bf16 v[{PA+4*cb}:{PA+4*cb+3}], v[{AS+4*n}:{AS+4*n+3}], v[{WO+(n*4+cb)*4}:{WO+(n*4+cb)*4+3}], {src_c}")
    st(3, "pp")
    k(f"v_cmp_gt_u32 vcc, 32, v{LANE}")
    k("s_nop 2")
    k("s_and_saveexec_b64 s[82:83], vcc")
    k(f"ds_write_b128 v{aPW}, v[{PA}:{PA+3}]")
    k("s_nop 0")
    k(f"ds_write_b128 v{aPW}, v[{PA+4}:{PA+7}] offset:512")
    k("s_nop 0")
    k(f"ds_write_b128 v{aPW}, v[{PA+8}:{PA+11}] offset:1024")
    k("s_nop 0")
    k(f"ds_write_b128 v{aPW}, v[{PA+12}:{PA+15}] offset:1536")
    k("s_mov_b64 exec, s[82:83]")
    k("s_waitcnt lgkmcnt(0)\ns_barrier")
    st(4, "pp")
    pub = k.label("pub")
    k(f"s_cmp_ge_u32 s3, 2\ns_cbranch_scc1 {pub}")
    for w in range(8): k(f"ds_read_b128 v[{RING+4*w}:{RING+4*w+3}], v{aT16} offset:{L_P + w*2048}")
    sum8x4(RING)
    for n in range(4): k(f"v_and_or_b32 v{RING+n}, v{RING+n}, v{MSK}, s{sT10}")
    k(f"buffer_store_dwordx4 v[{RING}:{RING+3}], v{aPS}, s[44:47], s7 offen {hst}")
    k(f"{pub}:")
    st(5); st(1, "tail"); st(5, "pp"); st(3, "dbg"); st(5, "b0")
    k(f"s_cmp_eq_u32 s85, 2\ns_cbranch_scc1 {red}\ns_cmp_eq_u32 s85, 1\ns_cbranch_scc1 {ffn}\ns_branch {fin}")

    def poll(r0, r1, v0_, s0_, v1_, s1_, tagreg, tagmask, depth, sleep):
        lp = k.label("poll"); dn = k.label("pdn")
        def issue():
            k(f"buffer_load_dwordx4 v[{r0}:{r0+3}], v{v0_}, s[44:47], s{s0_} offen {hld}")
            k(f"buffer_load_dwordx4 v[{r1}:{r1+3}], v{v1_}, s[44:47], s{s1_} offen {hld}")
        k(f"s_mov_b32 s84, {SPIN}\ns_mov_b64 s[82:83], exec")
        for d in range(depth - 1):
            issue()
            if sleep: k(f"s_sleep {sleep}")
        k(f"{lp}:")
        issue()
        k(f"s_waitcnt vmcnt({2*(depth-1)})")
        k(f"v_bitop3_b32 v12, v{r0}, v{r0+1}, v{r0+2} bitop3:0x80\nv_or3_b32 v13, v{r0}, v{r0+1}, v{r0+2}")
        k(f"v_bitop3_b32 v12, v12, v{r0+3}, v{r1} bitop3:0x80\nv_or3_b32 v13, v13, v{r0+3}, v{r1}")
        k(f"v_bitop3_b32 v12, v12, v{r1+1}, v{r1+2} bitop3:0x80\nv_or3_b32 v13, v13, v{r1+1}, v{r1+2}")
        k(f"v_and_b32 v12, v12, v{r1+3}\nv_or_b32 v13, v13, v{r1+3}")
        k(f"v_xor_b32 v12, s{tagreg}, v12\nv_xor_b32 v13, s{tagreg}, v13\nv_or_b32 v12, v12, v13\nv_and_b32 v12, {tagmask}, v12\nv_cmp_ne_u32 vcc, 0, v12")
        k(f"s_and_b64 exec, exec, vcc\ns_cbranch_execz {dn}")
        if sleep: k(f"s_sleep {sleep}")
        k(f"s_sub_u32 s84, s84, 1\ns_cbranch_scc0 {lp}")
        k(f"{dn}:\ns_mov_b64 exec, s[82:83]")
    def tred(a, b):
        for n in range(4): k(f"v_and_b32 v{20+n}, v{MSK}, v{a+n}\nv_and_b32 v{28+n}, v{MSK}, v{b+n}")
        for n in range(4): k(f"v_add_f32 v{20+n}, v{20+n}, v{28+n}")
        k("s_nop 0")
        k("v_permlane32_swap_b32 v20, v21\nv_permlane32_swap_b32 v22, v23")
        k("v_add_f32 v20, v20, v21\nv_add_f32 v22, v22, v23\ns_nop 1")
        k("v_permlane16_swap_b32 v20, v22\nv_add_f32 v20, v20, v22\ns_nop 1")
        k("v_add_f32_dpp v20, v20, v20 row_ror:8 row_mask:0xf bank_mask:0xf")
    def stage2(off, dst):
        for w in range(8): k(f"ds_read_b32 v{RING+32+w}, v{rLR} offset:{off + w*128}")
        k("s_waitcnt lgkmcnt(4)")
        k(f"v_add_f32 v{RING+32}, v{RING+32}, v{RING+33}\nv_add_f32 v{RING+34}, v{RING+34}, v{RING+35}")
        k("s_waitcnt lgkmcnt(0)")
        k(f"v_add_f32 v{RING+36}, v{RING+36}, v{RING+37}\nv_add_f32 v{RING+38}, v{RING+38}, v{RING+39}")
        k(f"v_add_f32 v{RING+32}, v{RING+32}, v{RING+34}\nv_add_f32 v{RING+36}, v{RING+36}, v{RING+38}\nv_add_f32 v{dst}, v{RING+32}, v{RING+36}")

    k(f"{red}:")
    PR, FR_ = RING, RING + 8
    poll(PR, PR + 4, rPV, 12, rPV, 13, sT10, 0x3ff, pdepth[0], psleep[0])
    st(2, "tail")
    tred(PR, PR + 4)
    k(f"ds_write_b32 v{rLW}, v20 offset:{L_R}\ns_waitcnt lgkmcnt(0)\ns_barrier")
    HH = RING + 24
    nh = k.label("nh")
    k(f"s_cmp_lg_u32 s3, 0\ns_cbranch_scc1 {nh}")
    stage2(L_R, HH)
    k(f"v_lshlrev_b32 v{HH+1}, 16, v{rX}")
    bf16r(k, HH)
    k(f"v_add_f32 v{HH}, v{HH}, v{HH+1}")
    bf16r(k, HH)
    k(f"v_or_b32 v{HH+1}, s{sT16}, v{HH}")
    k(f"v_cmp_gt_u32 vcc, 32, v{LANE}\ns_and_saveexec_b64 s[82:83], vcc")
    k(f"buffer_store_dword v{HH+1}, v{rHV}, s[44:47], s16 offen {hst}")
    k("s_mov_b64 exec, s[82:83]")
    k(f"{nh}:")
    st(3, "tail"); st(6)
    poll(FR_, FR_ + 4, rFV0, 17, rFV1, 17, sT10, 0x3ff, pdepth[2], psleep[2])
    st(4, "tail")
    k(f"v_cmp_gt_u32 vcc, 48, v{LANE}\ns_nop 1")
    for n in range(4): k(f"v_cndmask_b32 v{24+n}, 0, v{FR_+4+n}, vcc")
    tred(FR_, 24)
    k(f"ds_write_b32 v{rLW}, v20 offset:{L_R+1024}\ns_waitcnt lgkmcnt(0)\ns_barrier")
    k(f"s_cmp_lg_u32 s3, 0\ns_cbranch_scc1 {fin}")
    stage2(L_R + 1024, HH + 2)
    bf16r(k, HH + 2)
    k(f"v_add_f32 v{HH+2}, v{HH+2}, v{HH}\nv_cvt_pk_bf16_f32 v{HH+2}, v{HH+2}, v{HH+2}")
    k(f"v_cmp_gt_u32 vcc, 32, v{LANE}\ns_and_saveexec_b64 s[82:83], vcc")
    k(f"buffer_store_short v{HH+2}, v{rXO}, s[32:35], 0 offen {outflags}")
    st(5, "tail")
    k(f"s_cmp_lg_u32 s87, 0\ns_cbranch_scc1 {fin}")
    k(f"s_mov_b64 exec, 1\nv_mov_b32 v12, s{sTF}\nv_mov_b32 v13, 0\nbuffer_store_dword v12, v13, s[44:47], 0 offen offset:{W_EPOCH} {outflags}")
    k(f"s_branch {fin}")

    k(f"{ffn}:")
    for u in range(4):
        m, t = divmod(u, 2)
        k(f"s_lshl_b32 s65, s3, 12\ns_add_u32 s65, s65, {L_GU + m*2048 + t*1024}\ns_mov_b32 m0, s65")
        k(f"s_add_u32 s65, s74, {t*32*3584}")
        k(f"buffer_load_dwordx4 v{X+4}, s[{48+4*m}:{51+4*m}], s65 offen {wflags} lds")
    FR, WDF, HF, HV = RING, RING + 16, RING + 24, RING + 32
    k(f"ds_read_b128 v[{WDF}:{WDF+3}], v{fWD}\nds_read_b128 v[{WDF+4}:{WDF+7}], v{fWD} offset:4096")
    def gu_frags():
        for m in range(2):
            for s in range(2):
                r0 = FR + (m*2+s)*4
                k(f"ds_read_b64_tr_b16 v[{r0}:{r0+1}], v{fTR} offset:{m*2048 + s*1024}")
                k(f"ds_read_b64_tr_b16 v[{r0+2}:{r0+3}], v{fTR} offset:{m*2048 + s*1024 + 128}")
    nw = k.label("nw"); jn = k.label("jn")
    k(f"s_cmp_ge_u32 s3, 2\ns_cbranch_scc1 {nw}")
    poll(HF, HF + 4, VOFF, 12, VOFF, 13, sT16, 0xffff, pdepth[1], psleep[1])
    st(2, "tail")
    gu_frags()
    for n in range(8): k(f"v_and_b32 v{HV+n}, 0xffff0000, v{HF+n}")
    k("s_nop 0")
    ln_stats1(k, HV, 20, 21, 22, 24, 65)
    ln_apply(k, HV, 8, 20, 21, 23, 22, refine=False)
    for q in range(4): k(f"v_cvt_pk_bf16_f32 v{24+q}, v{HV+2*q}, v{HV+2*q+1}")
    k(f"ds_write_b64 v{fHW}, v[24:25]\nds_write_b64 v{fHW}, v[26:27] offset:512")
    k(f"s_branch {jn}")
    k(f"{nw}:")
    k("s_waitcnt vmcnt(0)")
    st(2, "tail")
    gu_frags()
    k(f"{jn}:")
    st(6)
    k("s_waitcnt lgkmcnt(0)\ns_barrier")
    st(3, "tail")
    k(f"ds_read_b128 v[12:15], v{fAF}\nds_read_b128 v[16:19], v{fAF} offset:64")
    k("s_waitcnt lgkmcnt(1)")
    for s in range(2):
        if s == 1: k("s_waitcnt lgkmcnt(0)")
        for m in range(2):
            r0 = FR + (m*2+s)*4
            src_c = "0" if s == 0 else f"v[{ACC+4*m}:{ACC+4*m+3}]"
            k(f"v_mfma_f32_16x16x32_bf16 v[{ACC+4*m}:{ACC+4*m+3}], v[{12+4*s}:{15+4*s}], v[{r0}:{r0+3}], {src_c}")
    k(f"v_cmp_gt_u32 vcc, 16, v{LANE}")
    k("s_nop 6")
    k("s_and_saveexec_b64 s[82:83], vcc")
    k(f"ds_write2_b32 v{fGW}, v{ACC}, v{ACC+4} offset0:0 offset1:1\nds_write2_b32 v{fGW}, v{ACC+1}, v{ACC+5} offset0:16 offset1:17")
    k("s_mov_b64 exec, s[82:83]\ns_waitcnt lgkmcnt(0)\ns_barrier")
    st(4, "tail")
    GA = RING + 32
    for t in range(2):
        for q in range(4): k(f"ds_read_b128 v[{GA+16*t+4*q}:{GA+16*t+4*q+3}], v{fGR} offset:{t*4*144 + q*16}")
    for t in range(2):
        k(f"s_waitcnt lgkmcnt({4*(1-t)})")
        b = GA + 16*t
        if pk:
            def pa(d, a, c): k(f"v_pk_add_f32 v[{d}:{d+1}], v[{a}:{a+1}], v[{c}:{c+1}]")
            pa(b, b, b+2); pa(b+4, b+4, b+6); pa(b+8, b+8, b+10); pa(b+12, b+12, b+14)
            pa(b, b, b+4); pa(b+8, b+8, b+12); pa(b, b, b+8)
        else:
            for e in range(2):
                k(f"v_add_f32 v{b+e}, v{b+e}, v{b+2+e}\nv_add_f32 v{b+4+e}, v{b+4+e}, v{b+6+e}\nv_add_f32 v{b+8+e}, v{b+8+e}, v{b+10+e}\nv_add_f32 v{b+12+e}, v{b+12+e}, v{b+14+e}")
            for e in range(2):
                k(f"v_add_f32 v{b+e}, v{b+e}, v{b+4+e}\nv_add_f32 v{b+8+e}, v{b+8+e}, v{b+12+e}")
            for e in range(2): k(f"v_add_f32 v{b+e}, v{b+e}, v{b+8+e}")
    B_ = [GA, GA + 16]
    for b in B_: k(f"v_cvt_pk_bf16_f32 v{b}, v{b}, v{b+1}")
    for b in B_: k(f"v_and_b32 v{b+1}, 0xffff0000, v{b}\nv_lshlrev_b32 v{b}, 16, v{b}")
    for b in B_: k(f"v_mul_f32 v{b+2}, 0xbfb8aa3b, v{b}")
    for b in B_: k(f"v_exp_f32 v{b+2}, v{b+2}")
    k("s_nop 0")
    for b in B_: k(f"v_add_f32 v{b+2}, 1.0, v{b+2}")
    for b in B_: k(f"v_rcp_f32 v{b+3}, v{b+2}")
    k("s_nop 0")
    for b in B_: k(f"v_mul_f32 v{b+4}, v{b}, v{b+3}")
    for b in B_: k(f"v_fma_f32 v{b+5}, -v{b+4}, v{b+2}, v{b}")
    for b in B_: k(f"v_fma_f32 v{b+4}, v{b+5}, v{b+3}, v{b+4}")
    for b in B_: k(f"v_cvt_pk_bf16_f32 v{b+4}, v{b+4}, v{b+4}")
    for b in B_: k(f"v_lshlrev_b32 v{b+4}, 16, v{b+4}")
    for b in B_: k(f"v_mul_f32 v{b+4}, v{b+4}, v{b+1}")
    for b in B_: k(f"v_cvt_pk_bf16_f32 v{b+4}, v{b+4}, v{b+4}")
    for t, b in enumerate(B_):
        for q in range(4): k(f"v_and_b32 v{AS+4*t+q}, v{b+4}, v{MK+q}")
    k("s_nop 0")
    k(f"v_mfma_f32_16x16x32_bf16 v[{ACC}:{ACC+3}], v[{AS}:{AS+3}], v[{WDF}:{WDF+3}], 0")
    k("s_nop 0")
    k(f"v_mfma_f32_16x16x32_bf16 v[{ACC}:{ACC+3}], v[{AS+4}:{AS+7}], v[{WDF+4}:{WDF+7}], v[{ACC}:{ACC+3}]")
    k("s_nop 7")
    k(f"ds_write_b128 v{fOW}, v[{ACC}:{ACC+3}]")
    k("s_waitcnt lgkmcnt(0)\ns_barrier")
    k(f"s_cmp_ge_u32 s3, 4\ns_cbranch_scc1 {fin}")
    k(f"ds_read_b128 v[12:15], v{fOR}\nds_read_b128 v[16:19], v{fOR} offset:4096\ns_waitcnt lgkmcnt(0)")
    for n in range(4): k(f"v_add_f32 v{12+n}, v{12+n}, v{16+n}")
    for n in range(4): k(f"v_and_or_b32 v{12+n}, v{12+n}, v{MSK}, s{sT10}")
    k(f"buffer_store_dwordx4 v[12:15], v{aPS}, s[44:47], s16 offen {hst}")
    st(5, "tail")
    k(f"{fin}:")
    if stamps == "dbg":
        stf = k.label("stf")
        k(f"s_cmp_lg_u32 s3, 0\ns_cbranch_scc1 {stf}")
        k("s_mov_b32 s65, -1\ns_cmp_eq_u32 s2, 193\ns_cselect_b32 s65, 0, s65\ns_cmp_eq_u32 s2, 2\ns_cselect_b32 s65, 20, s65\ns_cmp_eq_u32 s2, 129\ns_cselect_b32 s65, 40, s65")
        k(f"s_cmp_eq_u32 s65, -1\ns_cbranch_scc1 {stf}")
        k("s_waitcnt vmcnt(0)")
        k("s_memrealtime s[4:5]\ns_load_dwordx2 s[6:7], s[0:1], 80\ns_waitcnt lgkmcnt(0)")
        k("s_mov_b32 s84, s6\ns_and_b32 s85, s7, 0xffff\ns_mov_b32 s86, 256\ns_mov_b32 s87, 0x20000")
        k("s_mov_b64 exec, 1\nv_mov_b32 v10, s65")
        for i, r in enumerate([SB, SB+2, SB+4, SB+6, 4]):
            k(f"v_mov_b32 v8, s{r}")
            k(f"buffer_store_dword v8, v10, s[84:87], 0 offen offset:{4*i}")
        k("s_waitcnt vmcnt(0)")
        k(f"{stf}:")
    elif stamps == "prog":
        k("s_mov_b64 exec, 1\ns_waitcnt vmcnt(0) lgkmcnt(0)")
        k(f"s_lshl_b32 s65, s2, 3\ns_add_u32 s65, s65, s3\ns_lshl_b32 s65, s65, 6\ns_add_u32 s65, s65, {STAMP_BASE}\ns_add_u32 s84, s14, s65\ns_addc_u32 s85, s15, 0\ns_and_b32 s85, s85, 0xffff\ns_mov_b32 s86, 64\ns_mov_b32 s87, 0x20000")
        k(f"v_mov_b32 v10, 0\nv_mov_b32 v8, s{SB}")
        k("buffer_store_dwordx4 v[240:243], v10, s[84:87], 0 offen\nbuffer_store_dwordx4 v[244:247], v10, s[84:87], 0 offen offset:16\nbuffer_store_dword v8, v10, s[84:87], 0 offen offset:32")
        k("s_waitcnt vmcnt(0)")
    elif stamps:
        stf = k.label("stf")
        k(f"s_cmp_lg_u32 s3, {stw}\ns_cbranch_scc1 {stf}")
        k("s_waitcnt vmcnt(0)")
        k("s_memrealtime s[4:5]\ns_waitcnt lgkmcnt(0)")
        k(f"s_lshl_b32 s65, s2, 6\ns_add_u32 s65, s65, {STAMP_BASE}\ns_add_u32 s84, s14, s65\ns_addc_u32 s85, s15, 0\ns_and_b32 s85, s85, 0xffff\ns_mov_b32 s86, 64\ns_mov_b32 s87, 0x20000")
        k("s_mov_b64 exec, 1\nv_mov_b32 v10, 0")
        for i in range(7):
            k(f"v_mov_b32 v8, s{SB+2*i}\nv_mov_b32 v9, s{SB+2*i+1}\nbuffer_store_dwordx2 v[8:9], v10, s[84:87], 0 offen offset:{8*i}\ns_waitcnt vmcnt(0)")
        k("v_mov_b32 v8, s4\nv_mov_b32 v9, s5\nbuffer_store_dwordx2 v[8:9], v10, s[84:87], 0 offen offset:56\ns_waitcnt vmcnt(0)")
        k(f"{stf}:")
    if xccdbg:
        xd = k.label("xd")
        k(f"s_cmp_ge_u32 s2, 16\ns_cbranch_scc1 {xd}\ns_cmp_lg_u32 s3, 0\ns_cbranch_scc1 {xd}")
        k("s_load_dwordx2 s[6:7], s[0:1], 80\ns_getreg_b32 s8, hwreg(HW_REG_XCC_ID)\ns_and_b32 s8, s8, 15\ns_or_b32 s8, s8, 0x100\ns_waitcnt lgkmcnt(0)")
        k("s_mov_b32 s84, s6\ns_and_b32 s85, s7, 0xffff\ns_mov_b32 s86, 256\ns_mov_b32 s87, 0x20000")
        k("s_mov_b64 exec, 1\ns_lshl_b32 s9, s2, 2\nv_mov_b32 v10, s9\nv_mov_b32 v8, s8\nbuffer_store_dword v8, v10, s[84:87], 0 offen\ns_waitcnt vmcnt(0)")
        k(f"{xd}:")
    k(f"{end}:\ns_endpgm")
    return k


HEADER = """Kernarg layout for this problem (96 bytes, ptrs only, base s[0:1]):
  offset   0: d_in[0] A_x  shape=(2, 1, 512) bf16          offset   8: d_in[1] A_k_cache (2, 32, 8192, 128) bf16
  offset  16: d_in[2] A_v_cache (2, 32, 8192, 128) bf16    offset  24: d_in[3] A_wq (512, 4096) bf16
  offset  32: d_in[4] A_wo (4096, 512) bf16                offset  40: d_in[5] B_x (unused by the reference)
  offset  48: d_in[6] B_w_gate (512, 1792) bf16            offset  56: d_in[7] B_w_up (512, 1792) bf16
  offset  64: d_in[8] B_w_down (1792, 512) bf16            offset  72: d_out (2, 1, 512) bf16
  offset  80: d_debug 256 bytes                            offset  88: d_ws workspace
One persistent launch, 256 workgroups (one per CU) x 8 waves.  Workgroup = (key split of 2048, batch, head).
  1. q = LN(x) @ wq : each workgroup projects 128 rows for its head, the 4 splits exchange the partial sums.
  2. K then V of the split are streamed once (nt loads, 16-deep register ring per wave); softmax uses the true max:
     per-wave (max, sum) are exchanged between the splits while V streams, so every wave scales its own P@V exactly.
  3. o @ wo per workgroup (wo rows of the head prefetched into registers) -> partial [512] -> 32 reducer workgroups
     -> h = x + attn -> 112 ffn workgroups (LN, gate/up, silu, down; weights staged in LDS) -> reducers -> out.
Hand-offs between workgroups go through d_ws as self-validating granules: every dword (or 16-byte granule) carries a
tag derived from an epoch word kept in d_ws (read at entry, bumped at exit), which only tells this launch's hand-offs
from stale contents.  All polling loops are bounded."""
def out(name, header="", **kw):
    k = v4(**kw); build(f"../{name}.s", [(k, 256, 512, LDS_BYTES)], [k], header=header)
if __name__ == "__main__":
    out("v4")
    out("v4_st", stamps="main")
    out("v4_t", stamps="tail")
    for b1 in (1, 2, 3, 4):
        out(f"v4_b{b1}_m", eb1=b1, **dict(stamps="main", pdepth=(3,3,3), psleep=(4,4,4)))
        out(f"v4_b{b1}_p", eb1=b1, **dict(stamps="pro", pdepth=(3,3,3), psleep=(4,4,4)))
    out("v4_b3", eb1=3, pdepth=(3,3,3), psleep=(4,4,4))
    out("v4_b3w4_m", eb1=3, wopf=4, **dict(stamps="main", pdepth=(3,3,3), psleep=(4,4,4)))
    P = dict(stamps="main", pdepth=(3,3,3), psleep=(4,4,4))
    out("v4_x_base", **P)
    out("v4_x_nowo", exp="nowo", **P)
    out("v4_x_noq_nowo", exp="nowo", noq=True, **P)
    out("v4_x_noq", noq=True, **P)
    Q4 = dict(pro4=True, early=6, eb_y=4, pdepth=(3,3,3), psleep=(4,4,4))
    out("v4_r_base", stamps="main", **Q4)
    out("v4_r_even", stamps="main", evenffn=True, **Q4)
    out("v4_r_even_t", stamps="tail", evenffn=True, **Q4)
    out("v4_r_even_t2", stamps="tail", evenffn=True, stw=2, **Q4)
    out("v4_even", evenffn=True, **Q4)
    out("v4_col", evenffn=True, colord=True, **Q4)
    out("final", header=HEADER, evenffn=True, colord=True, pro4=True, early=6, eb_y=4, mlsleep=0, pdepth=(1,1,1), psleep=(0,0,0))
    NS = dict(evenffn=True, colord=True, pro4=True, early=6, eb_y=4, mlsleep=0)
    out("v4_ns1_m", pdepth=(1,1,1), psleep=(0,0,0), stamps="main", **NS)
    out("v4_ns2_m", pdepth=(2,2,2), psleep=(0,0,0), stamps="main", **NS)
    out("v4_ns1", pdepth=(1,1,1), psleep=(0,0,0), **NS)
    out("v4_tw", pdepth=(1,1,1), psleep=(0,0,0), tlbwarm=True, **NS)
    out("v4_tw_m", pdepth=(1,1,1), psleep=(0,0,0), tlbwarm=True, stamps="main", **NS)
    out("v4_ns2", pdepth=(2,2,2), psleep=(0,0,0), **NS)
    for nm, a, b in [("11", "sc1", "sc1"), ("0101", "sc0 sc1", "sc0 sc1"), ("011", "sc0 sc1", "sc1"), ("101", "sc1", "sc0 sc1"), ("1nt", "sc1", "sc1 nt"), ("nt1", "sc1 nt", "sc1")]:
        out(f"v4_hs_{nm}_t", evenffn=True, colord=True, hst=a, hld=b, stamps="tail", **Q4)
    out("v4_b0_w1", evenffn=True, colord=True, stamps="b0", stw=1, **Q4)
    out("v4_b0_w3", evenffn=True, colord=True, stamps="b0", stw=3, **Q4)
    CB = dict(evenffn=True, colord=True, pro4=True, pdepth=(3,3,3), psleep=(4,4,4))
    for e, y, sp in [(6, 4, 0), (6, 4, 1), (6, 4, 2), (6, 4, 3), (5, 4, 2), (5, 3, 1), (8, 4, 2), (4, 4, 1), (7, 4, 2)]:
        out(f"v4_sp_e{e}y{y}s{sp}", early=e, eb_y=y, w0split=sp, stamps="main", **CB)
        out(f"v4_sp_e{e}y{y}s{sp}_p", early=e, eb_y=y, w0split=sp, stamps="pro", **CB)
    out("v4_col_dbg", evenffn=True, colord=True, stamps="dbg", **Q4)
    out("v4_col_r7", evenffn=True, colord=True, redcls=7, **Q4)
    out("v4_col_r7_m", evenffn=True, colord=True, redcls=7, stamps="main", **Q4)
    out("v4_col_m", evenffn=True, colord=True, stamps="main", **Q4)
    out("v4_wnt_m", evenffn=True, wflags="nt", stamps="main", **Q4)
    out("v4_wnt", evenffn=True, wflags="nt", **Q4)
    ROT = {"m": "s_lshr_b32 s63, s2, 3", "w": "s_mov_b32 s63, s2", "w5": "s_mul_i32 s63, s2, 5",
           "mx": "s_lshr_b32 s63, s2, 3\ns_and_b32 s65, s2, 7\ns_lshl_b32 s65, s65, 1\ns_add_u32 s63, s63, s65",
           "x2": "s_and_b32 s63, s2, 7\ns_lshl_b32 s63, s63, 1",
           "m2w": "s_lshr_b32 s63, s2, 3\ns_lshl_b32 s65, s3, 2\ns_add_u32 s63, s63, s65"}
    for nm, code in ROT.items():
        out(f"v4_rot_{nm}_m", evenffn=True, rot=code, stamps="main", **Q4)
        out(f"v4_rot_{nm}", evenffn=True, rot=code, **Q4)
    out("v4_rot_m_h1_m", evenffn=True, rot=ROT["m"], hmap=1, stamps="main", **Q4)
    R2 = {"2m": "s_lshr_b32 s63, s2, 2\ns_and_b32 s63, s63, 0x3e", "mh": "s_lshr_b32 s63, s2, 4", "s4": "s_lshr_b32 s63, s2, 6\ns_lshl_b32 s63, s63, 2",
          "b8": "s_bfe_u32 s63, s2, 0x10005\ns_lshl_b32 s63, s63, 3", "hh4": "s_bfe_u32 s63, s2, 0x20003\ns_lshl_b32 s63, s63, 2",
          "shh": "s_bfe_u32 s63, s2, 0x20003\ns_lshl_b32 s63, s63, 2\ns_lshr_b32 s65, s2, 6\ns_add_u32 s63, s63, s65"}
    for nm, code in R2.items(): out(f"v4_rot_{nm}_m", evenffn=True, rot=code, stamps="main", **Q4)
    out("v4_sh4_m", evenffn=True, share4=True, stamps="main", **Q4)
    out("v4_sh4", evenffn=True, share4=True, **Q4)
    out("v4_sh4_rm_m", evenffn=True, share4=True, rot=ROT["m"], stamps="main", **Q4)
    out("v4_sh4_hh4_m", evenffn=True, share4=True, rot=R2["hh4"], stamps="main", **Q4)
    out("v4_h1_m", evenffn=True, hmap=1, stamps="main", **Q4)
    out("v4_h2_m", evenffn=True, hmap=2, stamps="main", **Q4)
    out("v4_h1", evenffn=True, hmap=1, **Q4)
    D_ = dict(evenffn=True, pro4=True, stamps="main", pdepth=(3,3,3), psleep=(4,4,4))
    out("v4_d_4", early=4, eb_y=4, ninit=4, dist=4, **D_)
    out("v4_d_3", early=3, eb_y=3, ninit=3, dist=3, **D_)
    out("v4_d_2", early=2, eb_y=2, ninit=2, dist=2, **D_)
    out("v4_d_83", early=6, eb_y=4, ninit=8, dist=3, **D_)
    out("v4_d_82", early=6, eb_y=4, ninit=8, dist=2, **D_)
    out("v4_pk", evenffn=True, pk=True, **Q4)
    out("v4_pk_t", evenffn=True, pk=True, stamps="tail", **Q4)
    out("v4_pk_m", evenffn=True, pk=True, stamps="main", **Q4)
    for w in (0, 1, 4, 7): out(f"v4_pp_w{w}", evenffn=True, stamps="pp", stw=w, **Q4)
    B = dict(evenffn=True, pro4=True, stamps="main")
    out("v4_s_base", early=6, eb_y=4, pdepth=(3,3,3), psleep=(4,4,4), **B)
    out("v4_s_p111", early=6, eb_y=4, pdepth=(1,1,1), psleep=(1,1,1), **B)
    out("v4_s_p222", early=6, eb_y=4, pdepth=(2,2,2), psleep=(3,3,3), **B)
    out("v4_s_p444", early=6, eb_y=4, pdepth=(4,4,4), psleep=(2,2,2), **B)
    out("v4_s_p313", early=6, eb_y=4, pdepth=(3,1,3), psleep=(4,1,4), **B)
    out("v4_s_b27", early=6, eb_y=4, pdepth=(3,3,3), psleep=(4,4,4), b0at=27, **B)
    out("v4_s_b28", early=6, eb_y=4, pdepth=(3,3,3), psleep=(4,4,4), b0at=28, **B)
    out("v4_s_wopf4", early=6, eb_y=4, pdepth=(3,3,3), psleep=(4,4,4), wopf=4, **B)
    out("v4_s_e5y3", early=5, eb_y=3, pdepth=(3,3,3), psleep=(4,4,4), **B)
    out("v4_s_e7y4", early=7, eb_y=4, pdepth=(3,3,3), psleep=(4,4,4), **B)
    out("v4_even_sc1", evenffn=True, outflags="sc1", **Q4)
    out("v4_even_sc01", evenffn=True, outflags="sc0 sc1", **Q4)
    out("v4_even_nt", evenffn=True, outflags="nt", **Q4)
    out("v4_par", evenffn=True, par=True, **Q4)
    out("v4_par_m", evenffn=True, par=True, stamps="main", **Q4)
    out("v4_even_x", evenffn=True, xccdbg=True, **Q4)
    for e, y in [(8, 4), (8, 8), (8, 2), (6, 4), (4, 4), (6, 3), (5, 3), (4, 2)]:
        out(f"v4_q_e{e}y{y}", pro4=True, early=e, eb_y=y, **P)
    out("v4_q84", pro4=True, early=8, eb_y=4, pdepth=(3,3,3), psleep=(4,4,4))
    out("v4_q84_p", pro4=True, early=8, eb_y=4, stamps="pro", pdepth=(3,3,3), psleep=(4,4,4))
    for e, pf in [(8, 8), (8, 4), (6, 6), (4, 4), (7, 7), (8, 6)]:
        out(f"v4_u_e{e}p{pf}", early=e, w0pf=pf, **P)
        out(f"v4_u_e{e}p{pf}nb", early=e, w0pf=pf, bar_a=False, **P)
    out("v4_u88", early=8, w0pf=8, pdepth=(3,3,3), psleep=(4,4,4))
    for wl in (0, 4, 5, 7): out(f"v4_w_late{wl}", noq=True, w0late=True, wlate=wl, **P)
    for e in (7, 6, 4): out(f"v4_w_e{e}", noq=True, early=e, **P)
    out("v4_z_l4", elast=4, **P)
    out("v4_z_l4b3", elast=4, eb1=3, **P)
    out("v4_z_l4b5", elast=4, eb1=5, **P)
    out("v4_z_l4nb", elast=4, bar_a=False, **P)
    for d in (200, 400, 600, 800, 1000):
        out(f"v4_y_d{d}", noq=True, qdelay=d, **P)
        out(f"v4_y_d{d}_w0", noq=True, qdelay=d, w0late=True, **P)
    out("v4_x_noq2", noq=2, early=0, **P)
    out("v4_x_noq1e0", noq=1, early=0, **P)
    for d in (1, 2, 3, 4): out(f"v4_x_wopf{d}", wopf=d, **P)
    out("v4_wopf2", wopf=2, pdepth=(3,3,3), psleep=(4,4,4))
    for e, w, el, ba in [(8, 4, 3, True), (8, None, 7, True), (8, None, 3, True), (4, 4, 7, True), (0, None, 7, True)]:
        for stw in (0, 1, 5):
            nm = f"v4_g{e}w{w if w is not None else 'n'}l{el}_w{stw}"
            out(nm, stamps="pro", pdepth=(3,3,3), psleep=(4,4,4), early=e, ewin=w, elast=el, bar_a=ba, stw=stw)
    for e, w, el, ba in [(8, 4, 3, True), (8, 4, 3, False), (8, 8, 3, True), (8, 2, 3, True), (8, None, 3, True), (8, 4, 4, True), (8, 4, 2, True), (8, 0, 7, True), (8, 4, 5, True)]:
        nm = f"v4_f{e}w{w if w is not None else 'n'}l{el}{'' if ba else 'nb'}"
        out(nm, stamps="main", pdepth=(3,3,3), psleep=(4,4,4), early=e, ewin=w, elast=el, bar_a=ba)
    out("v4_noq8_m", stamps="main", pdepth=(3,3,3), psleep=(4,4,4), early=8, noq=True)
    out("v4_noq4_m", stamps="main", pdepth=(3,3,3), psleep=(4,4,4), early=4, noq=True)
    for e, w in [(8, None), (3, 4), (4, 4), (5, 4), (6, 4), (4, 0), (4, 2), (6, 2), (5, 8), (8, 4)]:
        nm = f"v4_e{e}w{w if w is not None else 'n'}"
        out(nm + "_m", stamps="main", pdepth=(3,3,3), psleep=(4,4,4), early=e, ewin=w)
        out(nm + "_p", stamps="prog", pdepth=(3,3,3), psleep=(4,4,4), early=e, ewin=w)
    out("v4_prog", stamps="prog", pdepth=(3,3,3), psleep=(4,4,4))
    for pf in (16, 20, 23, 25, 27):
        out(f"v4_pf{pf}_t", stamps="tail", pdepth=(3,3,3), psleep=(4,4,4), l2pf=pf)
        out(f"v4_pf{pf}", pdepth=(3,3,3), psleep=(4,4,4), l2pf=pf)
    for nm, pd, ps in [("p111", (1,1,1), (1,1,1)), ("p313", (3,1,3), (4,1,4)), ("p333", (3,3,3), (4,4,4)), ("p222", (2,2,2), (5,5,5)), ("p434", (4,3,4), (3,4,3)), ("p333s2", (3,3,3), (2,2,2))]:
        out(f"v4_{nm}_t", stamps="tail", pdepth=pd, psleep=ps)
        out(f"v4_{nm}", pdepth=pd, psleep=ps)
```
